```python
import torch

def _softmax(x, axis=-1):
    return torch.softmax(x, dim=axis)
def _gelu(x):
    return torch.nn.functional.gelu(x, approximate="tanh")
def _silu(x):
    return torch.nn.functional.silu(x)
def _sigmoid(x):
    return torch.sigmoid(x)
def _layernorm(x, axis=-1, eps=1e-5):
    m = x.mean(dim=axis, keepdim=True)
    v = x.var(dim=axis, keepdim=True, unbiased=False)
    return (x - m) / torch.sqrt(v + eps)
def _scatter_add(tgt, idx, src, axis=0):
    return tgt.clone().index_add_(axis, idx, src)
def _segment_sum(src, seg, n):
    out = torch.zeros((n,) + src.shape[1:], dtype=src.dtype)
    return out.index_add_(0, seg, src)
def _pad(x, pw):
    flat = tuple(v for pair in reversed(pw) for v in pair)
    return torch.nn.functional.pad(x, flat)

kernel_name = 'concat_heads__ssm_conv_s4d__softmax_full_mha__prompt'

def setup_inputs():

    _w = (lambda a: (lambda t: t.to(torch.bfloat16) if t.is_floating_point() else t)(torch.as_tensor(a)))
    def _A_setup():
        Bsz, L, D, N = 1, 2048, 512, 128
        return {
            "u": _w((lambda *s: torch.randn(*s, dtype=torch.bfloat16) * 0.05)(Bsz, L, D)),
            "log_A_real": _w((lambda *s: torch.randn(*s, dtype=torch.bfloat16) * 6.4)(D, N) * 0.5),
            "A_imag": _w((lambda *s: torch.randn(*s, dtype=torch.bfloat16) * 0.1)(D, N) * 3.14),
            "C_real": _w((lambda *s: torch.randn(*s, dtype=torch.bfloat16) * 0.4)(D, N) / N ** 0.5),
            "C_imag": _w((lambda *s: torch.randn(*s, dtype=torch.bfloat16) * 0.4)(D, N) / N ** 0.5),
            "log_dt": _w((lambda *s: torch.randn(*s, dtype=torch.bfloat16) * 0.1)(D) * 0.5 - 4.0),
            "D_skip": _w((lambda *s: torch.randn(*s, dtype=torch.bfloat16) * 0.1)(D)),
        }
    _A_in = _A_setup()

    def _B_setup():
        B, S, D = 1, 2048, 512
        return {
            "x": _w((lambda *s: torch.randn(*s, dtype=torch.bfloat16) * 0.2)(B, S, D)),
            "wqkv": _w((lambda *s: torch.randn(*s, dtype=torch.bfloat16) * 0.2)(D, 3 * D)),
            "wo": _w((lambda *s: torch.randn(*s, dtype=torch.bfloat16) * 0.05)(D, D)),
        }
    _B_in = _B_setup()

    return {
        "A_u": _A_in["u"],
        "A_log_A_real": _A_in["log_A_real"],
        "A_A_imag": _A_in["A_imag"],
        "A_C_real": _A_in["C_real"],
        "A_C_imag": _A_in["C_imag"],
        "A_log_dt": _A_in["log_dt"],
        "A_D_skip": _A_in["D_skip"],
        "B_x": _B_in["x"],
        "B_wqkv": _B_in["wqkv"],
        "B_wo": _B_in["wo"],
    }

def reference(A_u, A_log_A_real, A_A_imag, A_C_real, A_C_imag, A_log_dt, A_D_skip, B_x, B_wqkv, B_wo):
    def _A_ref(u, log_A_real, A_imag, C_real, C_imag, log_dt, D_skip):
        L = u.shape[1]
        dt = torch.exp(log_dt)
        A = -torch.exp(log_A_real) + 1j * A_imag
        C = (C_real + 1j * C_imag) * dt[:, None]
        pos = (lambda x, dt: x.to(dt))(torch.arange(L), log_dt.dtype)
        P = torch.exp((A * dt[:, None])[:, :, None] * pos[None, None, :])
        K = 2.0 * torch.einsum("dn,dnl->dl", C, P).real
        L2 = 2 * L
        u_t = (lambda x, *d: x.permute(*d))(u, 0, 2, 1)
        Kf = (lambda x, *a, **k: torch.fft.rfft(x.float(), *a, **k))(K, L2)
        Uf = (lambda x, *a, **k: torch.fft.rfft(x.float(), *a, **k))(u_t, L2)
        y = (lambda x, *a, **k: torch.fft.irfft(x, *a, **k).to(torch.bfloat16))(Uf * Kf[None, :, :], L2)[:, :, :L]
        y = (lambda x, *d: x.permute(*d))(y, 0, 2, 1)
        return y + u * D_skip[None, None, :]

    def _B_ref(x, wqkv, wo):
        B, S, D = x.shape
        H = 32; Dh = D // H
        qkv = (lambda x, *d: x.permute(*d))((x @ wqkv).reshape(B, S, 3, H, Dh), 2, 0, 3, 1, 4)
        q, k, v = qkv[0], qkv[1], qkv[2]
        scale = Dh ** -0.5
        scores = torch.einsum("bhqd,bhkd->bhqk", q, k) * scale
        p = _softmax(scores, axis=-1)
        o = torch.einsum("bhqk,bhkd->bhqd", p, v)
        return (lambda x, *d: x.permute(*d))(o, 0, 2, 1, 3).reshape(B, S, D) @ wo

    a = _A_ref(A_u, A_log_A_real, A_A_imag, A_C_real, A_C_imag, A_log_dt, A_D_skip)
    b = _B_ref(B_x, B_wqkv, B_wo)
    return torch.concatenate([a, b], axis=-1)
```

```python
import struct

class Asm:
    def __init__(self):
        self.lines = []
        self.uid = 0
    def __call__(self, s):
        self.lines.append("    " + s)
    def raw(self, s):
        self.lines.append(s)
    def label(self, name):
        self.lines.append(name + ":")
    def comment(self, s):
        self.lines.append("    ; " + s)
    def newlabel(self, base):
        self.uid += 1
        return f"L_{base}_{self.uid}"
    def text(self):
        return "\n".join(self.lines) + "\n"
    def nop(self, n):
        while n > 0:
            k = min(n, 16)
            self(f"s_nop {k-1}")
            n -= k

def f2u(x):
    return struct.unpack("<I", struct.pack("<f", x))[0]

def hexf(x):
    return "0x%08x" % f2u(x)

def vr(lo, n=1):
    if n == 1:
        return f"v{lo}"
    return f"v[{lo}:{lo+n-1}]"

def sr(lo, n=1):
    if n == 1:
        return f"s{lo}"
    return f"s[{lo}:{lo+n-1}]"

def srd(a, s, base_lo, nbytes, add=None):
    if add:
        a(f"s_add_u32 s{s}, s{base_lo}, {add}")
        a(f"s_addc_u32 s{s+1}, s{base_lo+1}, 0")
        a(f"s_and_b32 s{s+1}, s{s+1}, 0xffff")
    else:
        a(f"s_mov_b32 s{s}, s{base_lo}")
        a(f"s_and_b32 s{s+1}, s{base_lo+1}, 0xffff")
    a(f"s_mov_b32 s{s+2}, {nbytes}")
    a(f"s_mov_b32 s{s+3}, 0x00020000")

def kernel_header(a, name):
    a.raw(".text")
    a.raw(f".globl {name}")
    a.raw(".p2align 8")
    a.raw(f".type {name},@function")
    a.label(name)

def kernel_desc(name, vgpr, sgpr=102):
    acc = ((vgpr + 3) // 4) * 4
    return f""".section .rodata,"a"
.p2align 6
.amdhsa_kernel {name}
  .amdhsa_next_free_vgpr {vgpr}
  .amdhsa_next_free_sgpr {sgpr}
  .amdhsa_accum_offset {acc}
  .amdhsa_group_segment_fixed_size 0
  .amdhsa_kernarg_size 104
  .amdhsa_user_sgpr_count 2
  .amdhsa_user_sgpr_kernarg_segment_ptr 1
  .amdhsa_system_sgpr_workgroup_id_x 1
  .amdhsa_float_denorm_mode_32 3
  .amdhsa_float_denorm_mode_16_64 3
.end_amdhsa_kernel
"""
```

```python
from asmlib import *
from k_gemm import WS_Q, WS_K, WS_V, WS_O, WS_TOTAL

def gen_attn(a, wg_base=0, U=8):
    end = a.newlabel("at_end")
    if wg_base:
        a(f"s_sub_u32 s2, s2, {wg_base}")
    a("s_cmp_ge_u32 s2, 256")
    a(f"s_cbranch_scc1 {end}")
    a("s_load_dwordx2 s[8:9], s[0:1], 96")
    a("s_and_b32 s10, s2, 31")
    a("s_lshr_b32 s11, s2, 5")
    ST = 0
    SA = 0
    SB = 16
    NEGM = 32
    OACC = 48
    QF = 64
    KF = 68
    VF = 76
    P = 92
    T = 100
    a(f"v_mov_b32 v{T}, v0")
    a(f"v_and_b32 v{T+1}, 63, v{T}")
    a(f"v_lshrrev_b32 v{T+2}, 6, v{T}")
    a("s_nop 0")
    a(f"v_readfirstlane_b32 s12, v{T+2}")
    a("s_waitcnt lgkmcnt(0)")
    srd(a, 24, 8, WS_TOTAL)
    a(f"v_lshlrev_b32 v{T+3}, 4, v{T}")
    a("s_lshl_b32 s13, s10, 16")
    a(f"s_add_u32 s14, s13, {WS_K}")
    for it in range(8):
        a(f"buffer_load_dwordx4 {vr(ST+4*it,4)}, v{T+3}, s[24:27], s14 offen")
        a("s_add_u32 s14, s14, 8192")
    a(f"s_add_u32 s14, s13, {WS_V}")
    for it in range(8):
        a(f"buffer_load_dwordx4 {vr(ST+32+4*it,4)}, v{T+3}, s[24:27], s14 offen")
        a("s_add_u32 s14, s14, 8192")
    a(f"v_and_b32 v{T+5}, 31, v{T+1}")
    a(f"v_lshrrev_b32 v{T+6}, 5, v{T+1}")
    a("s_lshl_b32 s15, s11, 8")
    a("s_lshl_b32 s16, s12, 5")
    a("s_add_u32 s15, s15, s16")
    a(f"v_add_u32 v{T+7}, s15, v{T+5}")
    a(f"v_lshlrev_b32 v{T+8}, 15, v{T+6}")
    a(f"v_lshl_add_u32 v{T+8}, v{T+7}, 4, v{T+8}")
    a(f"s_add_u32 s14, s13, {WS_Q}")
    a(f"buffer_load_dwordx4 {vr(QF,4)}, v{T+8}, s[24:27], s14 offen")
    a(f"v_add_u32 v{T+4}, 65536, v{T+3}")
    for it in range(16):
        a(f"s_waitcnt vmcnt({16-it})")
        if it < 8:
            a(f"ds_write_b128 v{T+3}, {vr(ST+4*it,4)} offset:{it*8192}")
        else:
            a(f"ds_write_b128 v{T+4}, {vr(ST+4*it,4)} offset:{(it-8)*8192}")
    VK = T + 9
    VV = T + 10
    a(f"v_lshlrev_b32 v{VK}, 15, v{T+6}")
    a(f"v_lshl_add_u32 v{VK}, v{T+5}, 4, v{VK}")
    a(f"v_and_b32 v{VV}, 15, v{T+1}")
    a(f"v_lshlrev_b32 v{VV}, 4, v{VV}")
    a(f"v_lshl_add_u32 v{VV}, v{T+6}, 8, v{VV}")
    a(f"v_add_u32 v{VV}, 65536, v{VV}")
    a(f"v_cmp_eq_u32 vcc, 16, v{T+5}")
    a(f"v_mov_b32 v{T+11}, 0x3f803f80")
    a("s_nop 1")
    a(f"v_cndmask_b32 v{T+11}, 0, v{T+11}, vcc")
    for r in range(16):
        a(f"v_mov_b32 v{VF+r}, v{T+11}")
    a("s_mov_b32 s20, 0x0000ffff")
    a("s_mov_b32 s21, 0x0000ffff")
    M0 = T + 12; M1 = T + 13
    a(f"v_mov_b32 v{M0}, 0xff800000")
    a(f"v_mov_b32 v{M1}, 0xff800000")
    a("s_waitcnt vmcnt(0) lgkmcnt(0)")
    a("s_barrier")
    S = [SA, SB]
    a(f"v_mov_b32 v{T+14}, v{VK}")
    VKc = T + 14
    a(f"ds_read_b128 {vr(KF,4)}, v{VKc}")
    a(f"ds_read_b128 {vr(KF+4,4)}, v{VKc} offset:512")
    a("s_waitcnt lgkmcnt(1)")
    a(f"v_mfma_f32_32x32x16_bf16 {vr(SA,16)}, {vr(KF,4)}, {vr(QF,4)}, 0")
    a("s_mov_b32 s17, 0")
    a.nop(8)
    lp1 = a.newlabel("at_p1")
    a.label(lp1)
    for u in range(U):
        a(f"ds_read_b128 {vr(KF+4*(u&1),4)}, v{VKc} offset:{(u+2)*512}")
        a("s_waitcnt lgkmcnt(1)")
        a(f"v_mfma_f32_32x32x16_bf16 {vr(S[(u+1)&1],16)}, {vr(KF+4*((u+1)&1),4)}, {vr(QF,4)}, 0")
        a("s_nop 1")
        s = S[u & 1]
        for i in range(4):
            a(f"v_max3_f32 v{M0}, v{s+4*i}, v{s+4*i+1}, v{M0}")
            a(f"v_max3_f32 v{M1}, v{s+4*i+2}, v{s+4*i+3}, v{M1}")
    a(f"v_add_u32 v{VKc}, {U*512}, v{VKc}")
    a(f"s_add_u32 s17, s17, {U}")
    a("s_cmp_lt_u32 s17, 64")
    a(f"s_cbranch_scc1 {lp1}")
    a(f"v_max_f32 v{M0}, v{M0}, v{M1}")
    a(f"v_mov_b32 v{M1}, v{M0}")
    a("s_nop 1")
    a(f"v_permlane32_swap_b32 v{M0}, v{M1}")
    a("s_nop 1")
    a(f"v_max_f32 v{M0}, v{M0}, v{M1}")
    a("s_waitcnt lgkmcnt(0)")
    a.nop(12)
    for r in range(16):
        a(f"v_sub_f32 v{NEGM+r}, 0, v{M0}")
        a(f"v_mov_b32 v{OACC+r}, 0")
    a(f"v_mov_b32 v{VKc}, v{VK}")
    VVc = T + 15
    a(f"v_mov_b32 v{VVc}, v{VV}")
    a(f"ds_read_b128 {vr(KF,4)}, v{VKc}")
    a(f"ds_read_b128 {vr(KF+4,4)}, v{VKc} offset:512")
    a("s_mov_b64 exec, s[20:21]")
    a(f"ds_read_b128 {vr(VF,4)}, v{VVc}")
    a(f"ds_read_b128 {vr(VF+4,4)}, v{VVc} offset:512")
    a("s_mov_b64 exec, -1")
    a("s_waitcnt lgkmcnt(3)")
    a(f"v_mfma_f32_32x32x16_bf16 {vr(SA,16)}, {vr(KF,4)}, {vr(QF,4)}, {vr(NEGM,16)}")
    a("s_mov_b32 s17, 0")
    a.nop(8)
    lp2 = a.newlabel("at_p2")
    a.label(lp2)
    for u in range(U):
        b = u & 1
        a(f"ds_read_b128 {vr(KF+4*b,4)}, v{VKc} offset:{(u+2)*512}")
        a("s_mov_b64 exec, s[20:21]")
        a(f"ds_read_b128 {vr(VF+8*(1-b),4)}, v{VVc} offset:{(u+1)*1024}")
        a(f"ds_read_b128 {vr(VF+8*(1-b)+4,4)}, v{VVc} offset:{(u+1)*1024+512}")
        a("s_mov_b64 exec, -1")
        a("s_waitcnt lgkmcnt(5)")
        a(f"v_mfma_f32_32x32x16_bf16 {vr(S[1-b],16)}, {vr(KF+4*(1-b),4)}, {vr(QF,4)}, {vr(NEGM,16)}")
        s = S[b]
        for i in range(16):
            a(f"v_exp_f32 v{s+i}, v{s+i}")
        for i in range(8):
            a(f"v_cvt_pk_bf16_f32 v{P+i}, v{s+2*i}, v{s+2*i+1}")
        a("s_waitcnt lgkmcnt(3)")
        a(f"v_mfma_f32_32x32x16_bf16 {vr(OACC,16)}, {vr(VF+8*b,4)}, {vr(P,4)}, {vr(OACC,16)}")
        a(f"v_mfma_f32_32x32x16_bf16 {vr(OACC,16)}, {vr(VF+8*b+4,4)}, {vr(P+4,4)}, {vr(OACC,16)}")
    a(f"v_add_u32 v{VKc}, {U*512}, v{VKc}")
    a(f"v_add_u32 v{VVc}, {U*1024}, v{VVc}")
    a(f"s_add_u32 s17, s17, {U}")
    a("s_cmp_lt_u32 s17, 64")
    a(f"s_cbranch_scc1 {lp2}")
    a("s_waitcnt lgkmcnt(0)")
    a.nop(16)
    a(f"v_mov_b32 v{M0}, v{OACC+8}")
    a(f"v_mov_b32 v{M1}, v{OACC+8}")
    a("s_nop 1")
    a(f"v_permlane32_swap_b32 v{M0}, v{M1}")
    a("s_nop 1")
    a(f"v_rcp_f32 v{M0}, v{M0}")
    a("s_nop 1")
    for r in range(8):
        a(f"v_mul_f32 v{OACC+r}, v{OACC+r}, v{M0}")
    for i in range(4):
        a(f"v_cvt_pk_bf16_f32 v{P+i}, v{OACC+2*i}, v{OACC+2*i+1}")
    a(f"s_add_u32 s14, s13, {WS_O}")
    a(f"buffer_store_dwordx4 {vr(P,4)}, v{T+8}, s[24:27], s14 offen")
    a.label(end)
```

```python
from asmlib import *
import math

MB = 1 << 20
WS_Q = 0
WS_K = 2 * MB
WS_V = 4 * MB
WS_O = 6 * MB
WS_TOTAL = 8 * MB

QSCALE = 0.25 * math.log2(math.e)

def gen_qkv(a, name="qkv_kernel", wg_base=0, exit_label=None):
    end = a.newlabel("qkv_end")
    if wg_base:
        a(f"s_sub_u32 s2, s2, {wg_base}")
    a("s_cmp_ge_u32 s2, 384")
    a(f"s_cbranch_scc1 {end}")
    a("s_load_dwordx2 s[4:5], s[0:1], 56")
    a("s_load_dwordx2 s[6:7], s[0:1], 64")
    a("s_load_dwordx2 s[8:9], s[0:1], 96")
    a("s_and_b32 s10, s2, 15")
    a("s_lshr_b32 s11, s2, 4")
    XA = 0
    WST = 128
    ACC = 192
    WF = 224
    T = 240
    a(f"v_mov_b32 v{T}, v0")
    a(f"v_and_b32 v{T+1}, 63, v{T}")
    a(f"v_lshrrev_b32 v{T+2}, 6, v{T}")
    a("s_nop 0")
    a(f"v_readfirstlane_b32 s12, v{T+2}")
    a("s_waitcnt lgkmcnt(0)")
    srd(a, 16, 4, 2 * MB)
    srd(a, 20, 6, 512 * 1536 * 2)
    srd(a, 24, 8, WS_TOTAL)
    a(f"v_lshrrev_b32 v{T+3}, 3, v{T}")
    a(f"v_mul_u32_u24 v{T+3}, 3072, v{T+3}")
    a(f"v_and_b32 v{T+4}, 7, v{T}")
    a(f"v_lshlrev_b32 v{T+5}, 4, v{T+4}")
    a(f"v_add_u32 v{T+3}, v{T+3}, v{T+5}")
    a("s_lshl_b32 s13, s11, 7")
    a(f"v_add_u32 v{T+3}, s13, v{T+3}")
    a("s_mov_b32 s14, 0")
    for it in range(16):
        a(f"buffer_load_dwordx4 {vr(WST+4*it,4)}, v{T+3}, s[20:23], s14 offen")
        if it < 15:
            a("s_add_u32 s14, s14, 98304")
    a(f"v_and_b32 v{T+5}, 31, v{T+1}")
    a(f"v_lshrrev_b32 v{T+6}, 5, v{T+1}")
    a("s_lshl_b32 s13, s10, 7")
    a("s_lshl_b32 s15, s12, 5")
    a("s_add_u32 s13, s13, s15")
    a(f"v_add_u32 v{T+7}, s13, v{T+5}")
    a(f"v_lshlrev_b32 v{T+8}, 10, v{T+7}")
    a(f"v_lshl_add_u32 v{T+8}, v{T+6}, 5, v{T+8}")
    for kc in range(16):
        a(f"buffer_load_dwordx4 {vr(XA+8*kc,4)}, v{T+8}, s[16:19], 0 offen offset:{kc*64}")
        a(f"buffer_load_dwordx4 {vr(XA+8*kc+4,4)}, v{T+8}, s[16:19], 0 offen offset:{kc*64+16}")
    a(f"v_lshrrev_b32 v{T+9}, 3, v{T}")
    a(f"v_lshlrev_b32 v{T+9}, 7, v{T+9}")
    a(f"v_lshrrev_b32 v{T+10}, 2, v{T+4}")
    a(f"v_bfe_u32 v{T+11}, v{T}, 4, 1")
    a(f"v_xor_b32 v{T+10}, v{T+10}, v{T+11}")
    a(f"v_lshl_add_u32 v{T+9}, v{T+10}, 6, v{T+9}")
    a(f"v_and_b32 v{T+10}, 3, v{T}")
    a(f"v_lshl_add_u32 v{T+9}, v{T+10}, 4, v{T+9}")
    for it in range(16):
        a(f"s_waitcnt vmcnt({32 + 15 - it})")
        a(f"ds_write_b128 v{T+9}, {vr(WST+4*it,4)} offset:{it*4096}")
    a(f"v_bfe_u32 v{T+10}, v{T+1}, 2, 2")
    a(f"v_lshl_add_u32 v{T+11}, v{T+6}, 4, v{T+10}")
    a(f"v_lshlrev_b32 v{T+11}, 7, v{T+11}")
    a(f"v_bfe_u32 v{T+12}, v{T+1}, 4, 1")
    a(f"v_lshl_add_u32 v{T+11}, v{T+12}, 5, v{T+11}")
    a(f"v_and_b32 v{T+12}, 3, v{T+1}")
    a(f"v_lshl_add_u32 v{T+11}, v{T+12}, 3, v{T+11}")
    a(f"v_lshrrev_b32 v{T+12}, 1, v{T+10}")
    a(f"v_lshl_add_u32 v{T+11}, v{T+12}, 6, v{T+11}")
    a(f"v_xor_b32 v{T+12}, 64, v{T+11}")
    VW = [T+11, T+12]
    for r in range(32):
        a(f"v_mov_b32 v{ACC+r}, 0")
    a("s_waitcnt lgkmcnt(0)")
    a("s_barrier")
    a("s_lshr_b32 s28, s11, 3")
    a("s_cmp_eq_u32 s28, 2")
    lblV = a.newlabel("qkv_vpath")
    lblEp = a.newlabel("qkv_ep")
    a(f"s_cbranch_scc1 {lblV}")
    def mainloop(transposed):
        steps = [(kc, st) for kc in range(16) for st in range(2)]
        def rd(idx):
            kc, st = steps[idx]
            buf = idx & 1
            off = (32 * kc + 8 * st) * 128
            for ct in range(2):
                base = WF + buf * 8 + ct * 4
                a(f"ds_read_b64_tr_b16 {vr(base,2)}, v{VW[ct]} offset:{off}")
                a(f"ds_read_b64_tr_b16 {vr(base+2,2)}, v{VW[ct]} offset:{off+512}")
        rd(0)
        for idx in range(32):
            kc, st = steps[idx]
            if idx + 1 < 32:
                rd(idx + 1)
                a(f"s_waitcnt vmcnt({2*(15-kc)}) lgkmcnt(4)")
            else:
                a(f"s_waitcnt vmcnt(0) lgkmcnt(0)")
            buf = idx & 1
            xa = XA + 8 * kc + 4 * st
            for ct in range(2):
                wf = WF + buf * 8 + ct * 4
                acc = vr(ACC + 16 * ct, 16)
                if transposed:
                    a(f"v_mfma_f32_32x32x16_bf16 {acc}, {vr(wf,4)}, {vr(xa,4)}, {acc}")
                else:
                    a(f"v_mfma_f32_32x32x16_bf16 {acc}, {vr(xa,4)}, {vr(wf,4)}, {acc}")
    mainloop(True)
    a.nop(16)
    a(f"s_mov_b32 s29, {hexf(QSCALE)}")
    a("s_cmp_eq_u32 s28, 0")
    a("s_cselect_b32 s29, s29, 1.0")
    for r in range(32):
        a(f"v_mul_f32 v{ACC+r}, s29, v{ACC+r}")
    a("s_and_b32 s30, s11, 7")
    a("s_lshl_b32 s30, s30, 2")
    a("s_lshl_b32 s30, s30, 16")
    a(f"s_lshl_b32 s31, s28, 21")
    a("s_add_u32 s30, s30, s31")
    a(f"v_lshlrev_b32 v{T+13}, 15, v{T+6}")
    a(f"v_lshl_add_u32 v{T+13}, v{T+7}, 4, v{T+13}")
    a(f"v_add_u32 v{T+13}, s30, v{T+13}")
    for ct in range(2):
        for hl in range(2):
            src = ACC + 16 * ct + 8 * hl
            dst = XA + (ct * 2 + hl) * 4
            for i in range(4):
                a(f"v_cvt_pk_bf16_f32 v{dst+i}, v{src+2*i}, v{src+2*i+1}")
            a(f"s_mov_b32 s31, {(2*ct+hl)*65536}")
            a(f"buffer_store_dwordx4 {vr(dst,4)}, v{T+13}, s[24:27], s31 offen")
    a(f"s_branch {end}")
    a.label(lblV)
    mainloop(False)
    a.nop(16)
    a("s_and_b32 s30, s11, 7")
    a("s_lshl_b32 s30, s30, 2")
    a("s_lshl_b32 s30, s30, 16")
    a(f"s_add_u32 s30, s30, {WS_V}")
    a("s_lshl_b32 s31, s13, 5")
    a("s_add_u32 s30, s30, s31")
    a(f"v_bfe_u32 v{T+13}, v{T+1}, 4, 1")
    a(f"v_lshlrev_b32 v{T+13}, 16, v{T+13}")
    a(f"v_lshl_add_u32 v{T+13}, v{T+6}, 8, v{T+13}")
    a(f"v_and_b32 v{T+14}, 15, v{T+1}")
    a(f"v_lshl_add_u32 v{T+13}, v{T+14}, 4, v{T+13}")
    a(f"v_add_u32 v{T+13}, s30, v{T+13}")
    for ct in range(2):
        for t16 in range(2):
            src = ACC + 16 * ct + 8 * t16
            dst = XA + (ct * 2 + t16) * 4
            for i in range(4):
                a(f"v_cvt_pk_bf16_f32 v{dst+i}, v{src+2*i}, v{src+2*i+1}")
            a(f"s_mov_b32 s31, {2*ct*65536}")
            a(f"buffer_store_dwordx4 {vr(dst,4)}, v{T+13}, s[24:27], s31 offen offset:{t16*512}")
    a.label(end)


def gen_oproj(a, wg_base=0):
    end = a.newlabel("op_end")
    if wg_base:
        a(f"s_sub_u32 s2, s2, {wg_base}")
    a("s_cmp_ge_u32 s2, 256")
    a(f"s_cbranch_scc1 {end}")
    a("s_load_dwordx2 s[4:5], s[0:1], 80")
    a("s_load_dwordx2 s[6:7], s[0:1], 72")
    a("s_load_dwordx2 s[8:9], s[0:1], 96")
    a("s_and_b32 s10, s2, 31")
    a("s_lshr_b32 s11, s2, 5")
    XA = 0; WST = 128; ACC = 192; WF = 224; T = 240
    a(f"v_mov_b32 v{T}, v0")
    a(f"v_and_b32 v{T+1}, 63, v{T}")
    a(f"v_lshrrev_b32 v{T+2}, 6, v{T}")
    a("s_nop 0")
    a(f"v_readfirstlane_b32 s12, v{T+2}")
    a("s_waitcnt lgkmcnt(0)")
    srd(a, 16, 4, 2048 * 1024 * 2)
    srd(a, 20, 6, 512 * 512 * 2)
    srd(a, 24, 8, WS_TOTAL)
    a(f"v_lshrrev_b32 v{T+3}, 3, v{T}")
    a(f"v_lshlrev_b32 v{T+3}, 10, v{T+3}")
    a(f"v_and_b32 v{T+4}, 7, v{T}")
    a(f"v_lshl_add_u32 v{T+3}, v{T+4}, 4, v{T+3}")
    a("s_lshl_b32 s13, s11, 7")
    a(f"v_add_u32 v{T+3}, s13, v{T+3}")
    a("s_mov_b32 s14, 0")
    for it in range(16):
        a(f"buffer_load_dwordx4 {vr(WST+4*it,4)}, v{T+3}, s[20:23], s14 offen")
        if it < 15:
            a("s_add_u32 s14, s14, 32768")
    a(f"v_and_b32 v{T+5}, 31, v{T+1}")
    a(f"v_lshrrev_b32 v{T+6}, 5, v{T+1}")
    a("s_lshl_b32 s13, s10, 6")
    a("s_lshr_b32 s15, s12, 1")
    a("s_lshl_b32 s15, s15, 5")
    a("s_add_u32 s13, s13, s15")
    a("s_and_b32 s28, s12, 1")
    a(f"v_add_u32 v{T+7}, s13, v{T+5}")
    a(f"v_lshlrev_b32 v{T+8}, 15, v{T+6}")
    a(f"v_lshl_add_u32 v{T+8}, v{T+7}, 4, v{T+8}")
    a(f"s_mov_b32 s14, {WS_O}")
    for h in range(32):
        a(f"buffer_load_dwordx4 {vr(XA+4*h,4)}, v{T+8}, s[24:27], s14 offen")
        if h < 31:
            a("s_add_u32 s14, s14, 65536")
    a(f"v_lshrrev_b32 v{T+9}, 3, v{T}")
    a(f"v_lshlrev_b32 v{T+9}, 7, v{T+9}")
    a(f"v_lshrrev_b32 v{T+10}, 2, v{T+4}")
    a(f"v_bfe_u32 v{T+11}, v{T}, 4, 1")
    a(f"v_xor_b32 v{T+10}, v{T+10}, v{T+11}")
    a(f"v_lshl_add_u32 v{T+9}, v{T+10}, 6, v{T+9}")
    a(f"v_and_b32 v{T+10}, 3, v{T}")
    a(f"v_lshl_add_u32 v{T+9}, v{T+10}, 4, v{T+9}")
    for it in range(16):
        a(f"s_waitcnt vmcnt({32 + 15 - it})")
        a(f"ds_write_b128 v{T+9}, {vr(WST+4*it,4)} offset:{it*4096}")
    a(f"v_bfe_u32 v{T+10}, v{T+1}, 2, 2")
    a(f"v_lshl_add_u32 v{T+11}, v{T+6}, 2, v{T+10}")
    a(f"v_lshlrev_b32 v{T+11}, 7, v{T+11}")
    a(f"v_bfe_u32 v{T+12}, v{T+1}, 4, 1")
    a(f"v_lshl_add_u32 v{T+11}, v{T+12}, 5, v{T+11}")
    a(f"v_and_b32 v{T+12}, 3, v{T+1}")
    a(f"v_lshl_add_u32 v{T+11}, v{T+12}, 3, v{T+11}")
    a(f"v_lshrrev_b32 v{T+12}, 1, v{T+10}")
    a(f"v_xor_b32 v{T+12}, s28, v{T+12}")
    a(f"v_lshl_add_u32 v{T+11}, v{T+12}, 6, v{T+11}")
    VW = T + 11
    for r in range(16):
        a(f"v_mov_b32 v{ACC+r}, 0")
    a("s_waitcnt lgkmcnt(0)")
    a("s_barrier")
    def rd(h):
        base = WF + (h & 1) * 4
        a(f"ds_read_b64_tr_b16 {vr(base,2)}, v{VW} offset:{16*h*128}")
        a(f"ds_read_b64_tr_b16 {vr(base+2,2)}, v{VW} offset:{(16*h+8)*128}")
    rd(0)
    acc = vr(ACC, 16)
    for h in range(32):
        if h + 1 < 32:
            rd(h + 1)
            a(f"s_waitcnt vmcnt({31-h}) lgkmcnt(2)")
        else:
            a("s_waitcnt vmcnt(0) lgkmcnt(0)")
        a(f"v_mfma_f32_32x32x16_bf16 {acc}, {vr(WF+(h&1)*4,4)}, {vr(XA+4*h,4)}, {acc}")
    a.nop(16)
    a("s_lshl_b32 s30, s11, 7")
    a("s_lshl_b32 s31, s28, 6")
    a("s_add_u32 s30, s30, s31")
    a("s_add_u32 s30, s30, 1024")
    a(f"v_lshlrev_b32 v{T+13}, 11, v{T+7}")
    a(f"v_lshl_add_u32 v{T+13}, v{T+6}, 3, v{T+13}")
    for i in range(4):
        a(f"v_cvt_pk_bf16_f32 v{XA+2*i}, v{ACC+4*i}, v{ACC+4*i+1}")
        a(f"v_cvt_pk_bf16_f32 v{XA+2*i+1}, v{ACC+4*i+2}, v{ACC+4*i+3}")
        a(f"buffer_store_dwordx2 {vr(XA+2*i,2)}, v{T+13}, s[16:19], s30 offen offset:{16*i}")
    a.label(end)
```

```python
from asmlib import *
import math
import numpy as np

L2E = float(np.float32(math.log2(math.e)))
L2E_LO = float(np.float32(math.log2(math.e) - L2E))
LN2 = float(np.float32(math.log(2.0)))
I2P = float(np.float32(1.0 / (2 * math.pi)))
I2P_LO = float(np.float32(1.0 / (2 * math.pi) - I2P))

KD = 0
KM = 12288
SCR = 43008
UC = SCR
RED = SCR + 35328
OST = RED + 16384
S4D_LDS = 110592
S4D_VGPR = 192
ROWS = 528
UCS = 4416

class RA:
    def __init__(self, start):
        self.n = start
    def __call__(self, k=1, align=1):
        while self.n % align: self.n += 1
        r = self.n
        self.n += k
        return r

def gen_s4d(a, wg_base=0):
    end = a.newlabel("s4_end")
    if wg_base:
        a(f"s_sub_u32 s2, s2, {wg_base}")
    a("s_cmp_ge_u32 s2, 256")
    a(f"s_cbranch_scc1 {end}")
    a("s_load_dwordx4 s[4:7], s[0:1], 0")
    a("s_load_dwordx4 s[8:11], s[0:1], 16")
    a("s_load_dwordx4 s[12:15], s[0:1], 32")
    a("s_load_dwordx2 s[16:17], s[0:1], 48")
    a("s_load_dwordx2 s[18:19], s[0:1], 80")
    a("s_and_b32 s20, s2, 7")
    a("s_lshl_b32 s20, s20, 5")
    a("s_lshr_b32 s21, s2, 3")
    a("s_add_u32 s20, s20, s21")
    a("s_lshl_b32 s20, s20, 1")
    R = RA(0)
    TID = R(); LANE = R(); WV = R(); CH = R(); NM = R()
    a(f"v_mov_b32 v{TID}, v0")
    a(f"v_and_b32 v{LANE}, 63, v{TID}")
    a(f"v_lshrrev_b32 v{WV}, 6, v{TID}")
    a(f"v_lshrrev_b32 v{CH}, 7, v{TID}")
    a(f"v_and_b32 v{NM}, 127, v{TID}")
    a("s_nop 0")
    a(f"v_readfirstlane_b32 s22, v{WV}")
    a("s_waitcnt lgkmcnt(0)")
    a("s_lshr_b32 s23, s22, 1")
    a("s_and_b32 s24, s22, 1")
    srd(a, 28, 4, 2048 * 512 * 2)
    srd(a, 32, 6, 512 * 128 * 2)
    srd(a, 36, 8, 512 * 128 * 2)
    srd(a, 40, 10, 512 * 128 * 2)
    srd(a, 44, 12, 512 * 128 * 2)
    srd(a, 48, 14, 1024)
    srd(a, 52, 16, 1024)
    srd(a, 56, 18, 2048 * 1024 * 2)
    t0 = R(); t1 = R(); t2 = R(); t3 = R()
    a("s_add_u32 s25, s20, s23")
    a("s_lshl_b32 s26, s25, 8")
    a(f"v_lshlrev_b32 v{t0}, 1, v{NM}")
    LA = R(); AI = R(); CR = R(); CI = R(); LDT = R(); DSK = R()
    a(f"buffer_load_ushort v{LA}, v{t0}, s[32:35], s26 offen")
    a(f"buffer_load_ushort v{AI}, v{t0}, s[36:39], s26 offen")
    a(f"buffer_load_ushort v{CR}, v{t0}, s[40:43], s26 offen")
    a(f"buffer_load_ushort v{CI}, v{t0}, s[44:47], s26 offen")
    a("s_lshl_b32 s26, s25, 1")
    a(f"v_mov_b32 v{t1}, 0")
    a(f"buffer_load_ushort v{LDT}, v{t1}, s[48:51], s26 offen")
    a(f"buffer_load_ushort v{DSK}, v{t1}, s[52:55], s26 offen")
    UR = R(8)
    a(f"v_lshlrev_b32 v{t2}, 10, v{TID}")
    a("s_lshl_b32 s26, s20, 1")
    for k in range(8):
        a(f"buffer_load_dword v{UR+k}, v{t2}, s[28:31], s26 offen")
        if k < 7:
            a("s_add_u32 s26, s26, 262144")
    a("s_waitcnt vmcnt(8)")
    for r in (LA, AI, CR, CI, LDT, DSK):
        a(f"v_lshlrev_b32 v{r}, 16, v{r}")
    a(f"s_mov_b32 s60, {hexf(L2E)}")
    a(f"s_mov_b32 s61, {hexf(L2E_LO)}")
    a(f"s_mov_b32 s62, {hexf(LN2)}")
    a(f"s_mov_b32 s63, {hexf(I2P)}")
    a(f"s_mov_b32 s64, {hexf(I2P_LO)}")
    a("s_mov_b32 s65, 0xffff0000")
    def exp_bf16(x):
        a(f"v_mul_f32 v{t0}, s60, v{x}")
        a(f"v_fma_f32 v{t1}, v{x}, s60, -v{t0}")
        a(f"v_fmac_f32 v{t1}, s61, v{x}")
        a(f"v_exp_f32 v{t0}, v{t0}")
        a(f"v_mul_f32 v{t1}, s62, v{t1}")
        a(f"v_fma_f32 v{t0}, v{t0}, v{t1}, v{t0}")
        a(f"v_cvt_pk_bf16_f32 v{t0}, v{t0}, v{t0}")
        a(f"v_lshlrev_b32 v{x}, 16, v{t0}")
    exp_bf16(LDT)
    exp_bf16(LA)
    ER = R(); FIH = R(); FIL = R()
    a(f"v_mul_f32 v{ER}, v{LA}, v{LDT}")
    a(f"v_mul_f32 v{ER}, -1.0, v{ER}")
    a(f"v_mul_f32 v{ER}, s60, v{ER}")
    a(f"v_mul_f32 v{AI}, v{AI}, v{LDT}")
    a(f"v_mul_f32 v{FIH}, s63, v{AI}")
    a(f"v_fma_f32 v{FIL}, v{AI}, s63, -v{FIH}")
    a(f"v_fmac_f32 v{FIL}, s64, v{AI}")
    a(f"v_mul_f32 v{CR}, v{CR}, v{LDT}")
    a(f"v_mul_f32 v{CR}, 2.0, v{CR}")
    a(f"v_mul_f32 v{CI}, v{CI}, v{LDT}")
    a(f"v_mul_f32 v{CI}, 2.0, v{CI}")
    def pw(t, re, im):
        a(f"s_mov_b32 s66, {hexf(float(t))}")
        a(f"v_mul_f32 v{t0}, s66, v{ER}")
        a(f"v_exp_f32 v{t0}, v{t0}")
        a(f"v_mul_f32 v{t1}, s66, v{FIH}")
        a(f"v_fract_f32 v{t1}, v{t1}")
        a(f"v_fmac_f32 v{t1}, s66, v{FIL}")
        a(f"v_cos_f32 v{t2}, v{t1}")
        a(f"v_sin_f32 v{t3}, v{t1}")
        a("s_nop 0")
        a(f"v_mul_f32 v{re}, v{t0}, v{t2}")
        a(f"v_mul_f32 v{im}, v{t0}, v{t3}")
    def cmul(xr, xi, cr, ci):
        a(f"v_mul_f32 v{t0}, v{xi}, v{ci}")
        a(f"v_mul_f32 v{t1}, v{xi}, v{cr}")
        a(f"v_fma_f32 v{t0}, v{xr}, v{cr}, -v{t0}")
        a(f"v_fma_f32 v{xi}, v{xr}, v{ci}, v{t1}")
        a(f"v_mov_b32 v{xr}, v{t0}")
    WR = R(); WI = R(); XR = R(); XI = R(); NI = R()
    SW = R()
    a(f"v_mul_u32_u24 v{SW}, 33792, v{CH}")
    a(f"v_lshl_add_u32 v{SW}, v{NM}, 2, v{SW}")
    a(f"v_add_u32 v{SW}, {SCR}, v{SW}")
    SRD_ = R()
    a(f"v_and_b32 v{t0}, 15, v{LANE}")
    a(f"v_mul_u32_u24 v{SRD_}, {ROWS}, v{t0}")
    a(f"v_lshrrev_b32 v{t1}, 4, v{LANE}")
    a(f"v_lshl_add_u32 v{SRD_}, v{t1}, 4, v{SRD_}")
    a("s_mul_i32 s26, s23, 33792")
    a("s_lshl_b32 s27, s24, 8")
    a("s_add_u32 s26, s26, s27")
    a(f"s_add_u32 s26, s26, {SCR}")
    a(f"v_add_u32 v{SRD_}, s26, v{SRD_}")
    KDW = R()
    a(f"v_lshlrev_b32 v{KDW}, 8, v{t1}")
    a(f"v_lshl_add_u32 v{KDW}, v{t0}, 2, v{KDW}")
    a("s_mul_i32 s26, s22, 3072")
    a(f"v_add_u32 v{KDW}, s26, v{KDW}")
    H = R(); Lo = R()
    FR = R(16, 4)
    DACC = R(4, 4)
    def emit(x, y, arr_h, arr_l, row):
        a(f"v_cvt_pk_bf16_f32 v{H}, v{x}, v{y}")
        a(f"v_lshlrev_b32 v{t0}, 16, v{H}")
        a(f"v_and_b32 v{t1}, s65, v{H}")
        a(f"v_sub_f32 v{t0}, v{x}, v{t0}")
        a(f"v_sub_f32 v{t1}, v{y}, v{t1}")
        a(f"v_cvt_pk_bf16_f32 v{Lo}, v{t0}, v{t1}")
        a(f"ds_write_b32 v{SW}, v{H} offset:{arr_h*8448 + row*ROWS}")
        a(f"ds_write_b32 v{SW}, v{Lo} offset:{arr_l*8448 + row*ROWS}")
    for s in range(4):
        pw(2 ** s, WR, WI)
        a(f"v_mov_b32 v{XR}, 1.0")
        a(f"v_mov_b32 v{XI}, 0")
        for b in range(16):
            emit(XR, XI, 2, 3, b)
            if b < 15:
                cmul(XR, XI, WR, WI)
        a(f"v_mov_b32 v{XR}, v{CR}")
        a(f"v_mov_b32 v{XI}, v{CI}")
        if s > 0:
            pw(128 * 2 ** s, WR, WI)
            cmul(XR, XI, WR, WI)
        pw(16 * 2 ** s, WR, WI)
        for r in range(16):
            a(f"v_sub_f32 v{NI}, 0, v{XI}")
            emit(XR, NI, 0, 1, r)
            if r < 15:
                cmul(XR, XI, WR, WI)
        a("s_waitcnt lgkmcnt(0)")
        a("s_barrier")
        for r in range(4):
            a(f"v_mov_b32 v{DACC+r}, 0")
        for ks in range(4):
            for arr in range(4):
                a(f"ds_read_b128 {vr(FR+4*arr,4)}, v{SRD_} offset:{arr*8448 + ks*64}")
            a("s_waitcnt lgkmcnt(0)")
            d = vr(DACC, 4)
            a(f"v_mfma_f32_16x16x32_bf16 {d}, {vr(FR+4,4)}, {vr(FR+8,4)}, {d}")
            a(f"v_mfma_f32_16x16x32_bf16 {d}, {vr(FR,4)}, {vr(FR+12,4)}, {d}")
            a(f"v_mfma_f32_16x16x32_bf16 {d}, {vr(FR,4)}, {vr(FR+8,4)}, {d}")
        a.nop(10)
        segoff = 0 if s == 0 else 128 * s + 128
        for r in range(4):
            a(f"ds_write_b32 v{KDW}, v{DACC+r} offset:{(segoff + 16*r)*4}")
        a("s_waitcnt lgkmcnt(0)")
        a("s_barrier")
    Z = R(4, 4)
    for r in range(4):
        a(f"v_mov_b32 v{Z+r}, 0")
    a(f"v_lshlrev_b32 v{t0}, 4, v{TID}")
    a(f"v_add_u32 v{t0}, {UC}, v{t0}")
    for k in range(9):
        a(f"ds_write_b128 v{t0}, {vr(Z,4)} offset:{k*4096}")
    a(f"v_cmp_gt_u32 vcc, 155, v{TID}")
    a("s_and_saveexec_b64 s[68:69], vcc")
    a(f"v_lshlrev_b32 v{t0}, 4, v{TID}")
    for arr in range(4):
        a(f"ds_write_b128 v{t0}, {vr(Z,4)} offset:{KM + arr*7680}")
    a("s_mov_b64 exec, s[68:69]")
    J = R(); IDX = R(16); KV = R(16)
    KDB = R()
    a(f"v_mul_u32_u24 v{KDB}, 6144, v{CH}")
    for e in range(16):
        a(f"v_lshl_add_u32 v{J}, v{NM}, 4, {e}")
        a(f"v_cvt_f32_u32 v{t0}, v{J}")
        a(f"v_cvt_pk_bf16_f32 v{t0}, v{t0}, v{t0}")
        a(f"v_and_b32 v{t0}, 0xffff, v{t0}")
        a(f"v_subrev_u32 v{t0}, 17024, v{t0}")
        a(f"v_cmp_gt_u32 vcc, 128, v{J}")
        a("s_nop 1")
        a(f"v_cndmask_b32 v{t0}, v{t0}, v{J}, vcc")
        a(f"v_lshl_add_u32 v{IDX+e}, v{t0}, 2, v{KDB}")
    for e in range(16):
        a(f"ds_read_b32 v{KV+e}, v{IDX+e}")
    a("s_waitcnt lgkmcnt(0)")
    for e in range(16):
        a(f"ds_read_b32 v{IDX+e}, v{IDX+e} offset:3072")
    a("s_waitcnt lgkmcnt(0)")
    for e in range(16):
        a(f"v_add_f32 v{KV+e}, v{KV+e}, v{IDX+e}")
    KW = R()
    a(f"v_lshrrev_b32 v{t0}, 1, v{NM}")
    a(f"v_mul_u32_u24 v{KW}, 80, v{t0}")
    a(f"v_and_b32 v{t0}, 1, v{NM}")
    a(f"v_lshl_add_u32 v{KW}, v{t0}, 5, v{KW}")
    a(f"v_mul_u32_u24 v{t0}, 15360, v{CH}")
    a(f"v_add_u32 v{KW}, v{KW}, v{t0}")
    a(f"v_add_u32 v{KW}, {KM + 31*80}, v{KW}")
    HP = R(8, 4); LP = R(8, 4)
    for p in range(8):
        x = KV + 2 * p; y = KV + 2 * p + 1
        a(f"v_cvt_pk_bf16_f32 v{HP+p}, v{x}, v{y}")
        a(f"v_lshlrev_b32 v{t0}, 16, v{HP+p}")
        a(f"v_and_b32 v{t1}, s65, v{HP+p}")
        a(f"v_sub_f32 v{t0}, v{x}, v{t0}")
        a(f"v_sub_f32 v{t1}, v{y}, v{t1}")
        a(f"v_cvt_pk_bf16_f32 v{LP+p}, v{t0}, v{t1}")
    a(f"ds_write_b128 v{KW}, {vr(HP,4)}")
    a(f"ds_write_b128 v{KW}, {vr(HP+4,4)} offset:16")
    a(f"ds_write_b128 v{KW}, {vr(LP,4)} offset:7680")
    a(f"ds_write_b128 v{KW}, {vr(LP+4,4)} offset:{7680+16}")
    a("s_waitcnt vmcnt(0) lgkmcnt(0)")
    a("s_barrier")
    UW = R()
    a(f"v_lshlrev_b32 v{t0}, 1, v{TID}")
    a(f"v_sub_u32 v{UW}, {UC + 2*2047}, v{t0}")
    for k in range(8):
        for phi in range(4):
            off = phi * UCS - 2 * phi - 512 * k
            need_mask = (k == 7 and phi > 0)
            a(f"v_add_u32 v{t1}, {off & 0xffffffff if off < 0 else off}, v{UW}")
            if need_mask:
                a(f"v_cmp_gt_u32 vcc, {256-phi}, v{TID}")
                a("s_and_saveexec_b64 s[68:69], vcc")
            a(f"ds_write_b16 v{t1}, v{UR+k}")
            a(f"ds_write_b16_d16_hi v{t1}, v{UR+k} offset:17664")
            if need_mask:
                a("s_mov_b64 exec, s[68:69]")
    a("s_waitcnt lgkmcnt(0)")
    a("s_barrier")
    A31 = R(); H2 = R()
    a(f"v_and_b32 v{A31}, 31, v{LANE}")
    a(f"v_lshrrev_b32 v{H2}, 5, v{LANE}")
    VB = R()
    a(f"v_mul_u32_u24 v{VB}, 80, v{A31}")
    a(f"v_lshl_add_u32 v{VB}, v{H2}, 4, v{VB}")
    a("s_mul_i32 s26, s23, 15360")
    a(f"s_add_u32 s26, s26, {KM + 31*80}")
    a(f"v_add_u32 v{VB}, s26, v{VB}")
    VA = R()
    a(f"v_and_b32 v{t0}, 3, v{A31}")
    a(f"v_sub_u32 v{t0}, 3, v{t0}")
    a(f"v_mul_u32_u24 v{VA}, {UCS}, v{t0}")
    a(f"v_lshrrev_b32 v{t0}, 2, v{A31}")
    a(f"v_lshlrev_b32 v{t0}, 3, v{t0}")
    a(f"v_sub_u32 v{VA}, v{VA}, v{t0}")
    a(f"v_lshl_add_u32 v{VA}, v{H2}, 4, v{VA}")
    a("s_mul_i32 s26, s23, 17664")
    a(f"s_add_u32 s26, s26, {UC + 2*2044}")
    a(f"v_add_u32 v{VA}, s26, v{VA}")
    ACC0 = R(16, 4); ACC1 = R(16, 4)
    for r in range(16):
        a(f"v_mov_b32 v{ACC0+r}, 0")
        a(f"v_mov_b32 v{ACC1+r}, 0")
    BF = R(16, 4)
    AF = R(16, 4)
    VBc = R(); VA1 = R(); VA0 = R()
    def conv_range(d_hi, d_lo, two):
        n = d_hi - d_lo + 1
        a(f"v_add_u32 v{VBc}, {(d_hi*80) & 0xffffffff}, v{VB}")
        a(f"v_add_u32 v{VA1}, {(-64*(32-d_hi)) & 0xffffffff}, v{VA}")
        if two:
            a(f"v_add_u32 v{VA0}, {(64*d_hi) & 0xffffffff}, v{VA}")
        a(f"s_mov_b32 s67, {n}")
        lp = a.newlabel("s4_conv")
        a.label(lp)
        a(f"ds_read_b128 {vr(BF,4)}, v{VBc}")
        a(f"ds_read_b128 {vr(BF+4,4)}, v{VBc} offset:32")
        a(f"ds_read_b128 {vr(BF+8,4)}, v{VBc} offset:7680")
        a(f"ds_read_b128 {vr(BF+12,4)}, v{VBc} offset:{7680+32}")
        for h in range(2):
            a(f"ds_read_b64 {vr(AF+4*h,2)}, v{VA1} offset:{32*h}")
            a(f"ds_read_b64 {vr(AF+4*h+2,2)}, v{VA1} offset:{32*h+8}")
        if two:
            for h in range(2):
                a(f"ds_read_b64 {vr(AF+8+4*h,2)}, v{VA0} offset:{32*h}")
                a(f"ds_read_b64 {vr(AF+8+4*h+2,2)}, v{VA0} offset:{32*h+8}")
        a(f"v_subrev_u32 v{VBc}, 80, v{VBc}")
        a(f"v_subrev_u32 v{VA1}, 64, v{VA1}")
        if two:
            a(f"v_subrev_u32 v{VA0}, 64, v{VA0}")
        a("s_waitcnt lgkmcnt(0)")
        c1 = vr(ACC1, 16); c0 = vr(ACC0, 16)
        for h in range(2):
            a(f"v_mfma_f32_32x32x16_bf16 {c1}, {vr(AF+4*h,4)}, {vr(BF+8+4*h,4)}, {c1}")
            a(f"v_mfma_f32_32x32x16_bf16 {c1}, {vr(AF+4*h,4)}, {vr(BF+4*h,4)}, {c1}")
        if two:
            for h in range(2):
                a(f"v_mfma_f32_32x32x16_bf16 {c0}, {vr(AF+8+4*h,4)}, {vr(BF+8+4*h,4)}, {c0}")
                a(f"v_mfma_f32_32x32x16_bf16 {c0}, {vr(AF+8+4*h,4)}, {vr(BF+4*h,4)}, {c0}")
        a("s_sub_u32 s67, s67, 1")
        a("s_cmp_lg_u32 s67, 0")
        a(f"s_cbranch_scc1 {lp}")
    lblB = a.newlabel("s4_partB")
    lblJ = a.newlabel("s4_join")
    a("s_cmp_eq_u32 s24, 1")
    a(f"s_cbranch_scc1 {lblB}")
    conv_range(32, 1, False)
    conv_range(0, -7, True)
    a(f"s_branch {lblJ}")
    a.label(lblB)
    conv_range(-8, -31, True)
    a.label(lblJ)
    a.nop(16)
    RW = R()
    a(f"v_lshlrev_b32 v{RW}, 2, v{LANE}")
    a("s_lshl_b32 s26, s22, 12")
    a(f"s_add_u32 s26, s26, {RED}")
    a(f"v_add_u32 v{t2}, s26, v{RW}")
    a("s_xor_b32 s27, s22, 1")
    a("s_lshl_b32 s27, s27, 12")
    a(f"s_add_u32 s27, s27, {RED}")
    a(f"v_add_u32 v{t3}, s27, v{RW}")
    lblB2 = a.newlabel("s4_xB"); lblJ2 = a.newlabel("s4_xJ")
    a("s_cmp_eq_u32 s24, 1")
    a(f"s_cbranch_scc1 {lblB2}")
    for r in range(16):
        a(f"ds_write_b32 v{t2}, v{ACC0+r} offset:{r*256}")
    a(f"s_branch {lblJ2}")
    a.label(lblB2)
    for r in range(16):
        a(f"ds_write_b32 v{t2}, v{ACC1+r} offset:{r*256}")
    for r in range(16):
        a(f"v_mov_b32 v{ACC1+r}, v{ACC0+r}")
    a.label(lblJ2)
    a("s_waitcnt lgkmcnt(0)")
    a("s_barrier")
    for r in range(16):
        a(f"ds_read_b32 v{ACC0+r}, v{t3} offset:{r*256}")
    LB = R()
    a("s_xor_b32 s26, s24, 1")
    a("s_lshl_b32 s26, s26, 10")
    a(f"v_lshlrev_b32 v{LB}, 5, v{A31}")
    a(f"v_lshl_add_u32 v{LB}, v{H2}, 2, v{LB}")
    a(f"v_add_u32 v{LB}, s26, v{LB}")
    a("s_mul_i32 s26, s23, 17664")
    a(f"s_add_u32 s26, s26, {UC + 2*2047}")
    a(f"v_lshlrev_b32 v{t0}, 1, v{LB}")
    a(f"v_sub_u32 v{t0}, s26, v{t0}")
    UV = BF
    for r in range(16):
        lo = 8 * (r >> 2) + (r & 3)
        a(f"v_subrev_u32 v{t1}, {2*lo}, v{t0}")
        a(f"ds_read_u16 v{UV+r}, v{t1}")
    a("s_waitcnt lgkmcnt(0)")
    a(f"v_lshlrev_b32 v{t2}, 2, v{LB}")
    a("s_lshl_b32 s26, s23, 1")
    a(f"s_add_u32 s26, s26, {OST}")
    a(f"v_add_u32 v{t2}, s26, v{t2}")
    for r in range(16):
        lo = 8 * (r >> 2) + (r & 3)
        a(f"v_add_f32 v{ACC1+r}, v{ACC1+r}, v{ACC0+r}")
        a(f"v_lshlrev_b32 v{UV+r}, 16, v{UV+r}")
        a(f"v_mul_f32 v{UV+r}, v{UV+r}, v{DSK}")
        a(f"v_cvt_pk_bf16_f32 v{t0}, v{ACC1+r}, v{UV+r}")
        a(f"v_lshlrev_b32 v{t1}, 16, v{t0}")
        a(f"v_and_b32 v{t0}, s65, v{t0}")
        a(f"v_add_f32 v{t0}, v{t0}, v{t1}")
        a(f"v_cvt_pk_bf16_f32 v{t0}, v{t0}, v{t0}")
        a(f"ds_write_b16 v{t2}, v{t0} offset:{lo*4}")
    a("s_waitcnt lgkmcnt(0)")
    a("s_barrier")
    a(f"v_lshlrev_b32 v{t0}, 2, v{TID}")
    a(f"v_add_u32 v{t0}, {OST}, v{t0}")
    for k in range(8):
        a(f"ds_read_b32 v{UR+k}, v{t0} offset:{k*1024}")
    a(f"v_lshlrev_b32 v{t1}, 11, v{TID}")
    a("s_lshl_b32 s26, s20, 1")
    a("s_waitcnt lgkmcnt(0)")
    for k in range(8):
        a(f"buffer_store_dword v{UR+k}, v{t1}, s[56:59], s26 offen")
        if k < 7:
            a("s_add_u32 s26, s26, 524288")
    a.label(end)
    assert R.n <= S4D_VGPR, R.n
```

```python
import sys
from asmlib import *
from k_gemm import *
from k_attn import *
try:
    from k_s4d import *
    HAVE_S4D = True
except ImportError:
    HAVE_S4D = False

NAME = "concat_heads__ssm_conv_s4d__softmax_full_mha__prompt"
hdr = open(f"cdna_kernels/{NAME}.s.ref").read().split("; Override launch geometry")[0]

def build():
    a = Asm()
    launches = []
    descs = []
    a.raw('.amdgcn_target "amdgcn-amd-amdhsa--gfx950"')
    kernel_header(a, "qkv_kernel"); gen_qkv(a); a("s_endpgm")
    launches.append("; @launch kernel=qkv_kernel grid=(384,1,1) block=(256,1,1) lds=65536")
    descs.append(kernel_desc("qkv_kernel", 256))
    if HAVE_S4D:
        kernel_header(a, "s4d_kernel"); gen_s4d(a); a("s_endpgm")
        launches.append(f"; @launch kernel=s4d_kernel grid=(256,1,1) block=(256,1,1) lds={S4D_LDS}")
        descs.append(kernel_desc("s4d_kernel", S4D_VGPR))
    kernel_header(a, "attn_kernel"); gen_attn(a); a("s_endpgm")
    launches.append("; @launch kernel=attn_kernel grid=(256,1,1) block=(512,1,1) lds=133120")
    descs.append(kernel_desc("attn_kernel", 120))
    kernel_header(a, "oproj_kernel"); gen_oproj(a); a("s_endpgm")
    launches.append("; @launch kernel=oproj_kernel grid=(256,1,1) block=(256,1,1) lds=65536")
    descs.append(kernel_desc("oproj_kernel", 256))
    return hdr + "\n".join(launches) + "\n" + a.text() + "".join(descs)

if __name__ == "__main__":
    out = sys.argv[1] if len(sys.argv) > 1 else f"cdna_kernels/{NAME}.s"
    open(out, "w").write(build())
    print("wrote", out)
```

```python
import struct

class Asm:
    def __init__(self):
        self.lines = []
        self.uid = 0
    def __call__(self, s):
        self.lines.append("    " + s)
    def raw(self, s):
        self.lines.append(s)
    def label(self, name):
        self.lines.append(name + ":")
    def comment(self, s):
        self.lines.append("    ; " + s)
    def newlabel(self, base):
        self.uid += 1
        return f"L_{base}_{self.uid}"
    def text(self):
        return "\n".join(self.lines) + "\n"
    def nop(self, n):
        while n > 0:
            k = min(n, 16)
            self(f"s_nop {k-1}")
            n -= k

def f2u(x):
    return struct.unpack("<I", struct.pack("<f", x))[0]

def hexf(x):
    return "0x%08x" % f2u(x)

def vr(lo, n=1):
    if n == 1:
        return f"v{lo}"
    return f"v[{lo}:{lo+n-1}]"

def sr(lo, n=1):
    if n == 1:
        return f"s{lo}"
    return f"s[{lo}:{lo+n-1}]"

def srd(a, s, base_lo, nbytes, add=None):
    if add:
        a(f"s_add_u32 s{s}, s{base_lo}, {add}")
        a(f"s_addc_u32 s{s+1}, s{base_lo+1}, 0")
        a(f"s_and_b32 s{s+1}, s{s+1}, 0xffff")
    else:
        a(f"s_mov_b32 s{s}, s{base_lo}")
        a(f"s_and_b32 s{s+1}, s{base_lo+1}, 0xffff")
    a(f"s_mov_b32 s{s+2}, {nbytes}")
    a(f"s_mov_b32 s{s+3}, 0x00020000")

def kernel_header(a, name):
    STAMP["k"] += 1
    a.raw(".text")
    a.raw(f".globl {name}")
    a.raw(".p2align 8")
    a.raw(f".type {name},@function")
    a.label(name)

def kernel_desc(name, vgpr, sgpr=102):
    acc = ((vgpr + 3) // 4) * 4
    return f""".section .rodata,"a"
.p2align 6
.amdhsa_kernel {name}
  .amdhsa_next_free_vgpr {vgpr}
  .amdhsa_next_free_sgpr {sgpr}
  .amdhsa_accum_offset {acc}
  .amdhsa_group_segment_fixed_size 0
  .amdhsa_kernarg_size 104
  .amdhsa_user_sgpr_count 2
  .amdhsa_user_sgpr_kernarg_segment_ptr 1
  .amdhsa_system_sgpr_workgroup_id_x 1
  .amdhsa_float_denorm_mode_32 3
  .amdhsa_float_denorm_mode_16_64 3
.end_amdhsa_kernel
"""

STAMP = {"on": False, "n": 0, "k": 0}
def stamp_init(a, sbase=92):
    if not STAMP["on"]:
        return
    STAMP["n"] = 0
    a(f"s_load_dwordx2 s[{sbase}:{sbase+1}], s[0:1], 96")
    a(f"v_lshrrev_b32 v127, 6, v0")
    a("s_nop 0")
    a(f"v_readfirstlane_b32 s{sbase+2}, v127")
    a("s_waitcnt lgkmcnt(0)")
    a(f"s_lshl_b32 s{sbase+3}, s2, 4")
    a(f"s_add_u32 s{sbase+3}, s{sbase+3}, s{sbase+2}")
    a(f"s_lshl_b32 s{sbase+3}, s{sbase+3}, 7")
    a(f"s_add_u32 s{sbase}, s{sbase}, s{sbase+3}")
    a(f"s_addc_u32 s{sbase+1}, s{sbase+1}, 0")
    a(f"s_add_u32 s{sbase}, s{sbase}, {(32<<20) + (STAMP['k']<<21)}")
    a(f"s_addc_u32 s{sbase+1}, s{sbase+1}, 0")
    a(f"s_and_b32 s{sbase+1}, s{sbase+1}, 0xffff")
    a(f"s_mov_b32 s{sbase+2}, 128")
    a(f"s_mov_b32 s{sbase+3}, 0x00020000")
    stamp(a, sbase)

def stamp(a, sbase=92):
    if not STAMP["on"]:
        return
    i = STAMP["n"]; STAMP["n"] += 1
    a(f"s_memrealtime s[{sbase+4}:{sbase+5}]")
    a(f"s_memtime s[{sbase+6}:{sbase+7}]")
    a("s_waitcnt lgkmcnt(0)")
    a(f"v_mov_b32 v127, s{sbase+4}")
    a(f"v_mov_b32 v126, 0")
    a(f"buffer_store_dword v127, v126, s[{sbase}:{sbase+3}], 0 offen offset:{4*i}")
    a(f"v_mov_b32 v127, s{sbase+6}")
    a(f"buffer_store_dword v127, v126, s[{sbase}:{sbase+3}], 0 offen offset:{64+4*i}")
```

```python
from asmlib import *
from k_gemm import WS_Q, WS_K, WS_V, WS_O, WS_KN, WS_TOTAL

ATTN_VGPR = 192
ATTN_BLOCK = 512
ATTN_LDS = 133120 + 6144
VH1 = 65536 + 32768 + 64
CB = 131072 + 1024

def wave_max(a, v):
    for sh in (1, 2, 4, 8):
        a("s_nop 1")
        a(f"v_max_f32_dpp v{v}, v{v}, v{v} row_shr:{sh} row_mask:0xf bank_mask:0xf")
    a("s_nop 1")
    a(f"v_max_f32_dpp v{v}, v{v}, v{v} row_bcast:15 row_mask:0xa bank_mask:0xf")
    a("s_nop 1")
    a(f"v_max_f32_dpp v{v}, v{v}, v{v} row_bcast:31 row_mask:0xc bank_mask:0xf")
    a("s_nop 1")

def gen_attn(a, wg_base=0, U=8, force_slow=False):
    end = a.newlabel("at_end")
    if wg_base:
        a(f"s_sub_u32 s2, s2, {wg_base}")
    a("s_cmp_ge_u32 s2, 256")
    a(f"s_cbranch_scc1 {end}")
    stamp_init(a)
    a("s_load_dwordx2 s[8:9], s[0:1], 96")
    a("s_and_b32 s10, s2, 7")
    a("s_lshl_b32 s10, s10, 2")
    a("s_bfe_u32 s11, s2, 0x20003")
    a("s_add_u32 s10, s10, s11")
    a("s_lshr_b32 s11, s2, 5")
    SA = 0; SB = 16; NEGM = 32; OACC = 48
    QF = 64; KF = 68; VF = 76; P = 92
    T = 100
    ST = 128
    a(f"v_mov_b32 v{T}, v0")
    a(f"v_and_b32 v{T+1}, 63, v{T}")
    a(f"v_lshrrev_b32 v{T+2}, 6, v{T}")
    a("s_nop 0")
    a(f"v_readfirstlane_b32 s12, v{T+2}")
    a("s_waitcnt lgkmcnt(0)")
    srd(a, 24, 8, WS_TOTAL)
    a("s_lshl_b32 s13, s10, 16")
    a(f"v_and_b32 v{T+5}, 31, v{T+1}")
    a(f"v_lshrrev_b32 v{T+6}, 5, v{T+1}")
    a("s_lshl_b32 s15, s11, 8")
    a("s_lshl_b32 s16, s12, 5")
    a("s_add_u32 s15, s15, s16")
    a(f"v_add_u32 v{T+7}, s15, v{T+5}")
    a(f"v_lshlrev_b32 v{T+8}, 15, v{T+6}")
    a(f"v_lshl_add_u32 v{T+8}, v{T+7}, 4, v{T+8}")
    a(f"s_add_u32 s14, s13, {WS_Q}")
    a(f"buffer_load_dwordx4 {vr(QF,4)}, v{T+8}, s[24:27], s14 offen")
    KN = T + 16
    a(f"v_lshlrev_b32 v{T+4}, 2, v{T+1}")
    a("s_lshl_b32 s14, s10, 8")
    a(f"s_add_u32 s14, s14, {WS_KN}")
    a(f"buffer_load_dword v{KN}, v{T+4}, s[24:27], s14 offen")
    chunks = []
    for s in range(4):
        chunks.append((WS_K + s * 8192, s * 8192))
        chunks.append((WS_K + 32768 + s * 8192, 32768 + s * 8192))
        chunks.append((WS_V + s * 8192, 65536 + s * 8192))
        chunks.append((WS_V + 32768 + s * 8192, VH1 + s * 8192))
    a(f"v_lshlrev_b32 v{T+3}, 4, v{T}")
    a(f"v_add_u32 v{T+4}, 65536, v{T+3}")
    for i, (g, l) in enumerate(chunks):
        a(f"s_add_u32 s14, s13, {g}")
        a(f"buffer_load_dwordx4 {vr(ST+4*i,4)}, v{T+3}, s[24:27], s14 offen")
    def wr(i):
        g, l = chunks[i]
        if l < 65536:
            a(f"ds_write_b128 v{T+3}, {vr(ST+4*i,4)} offset:{l}")
        else:
            a(f"ds_write_b128 v{T+4}, {vr(ST+4*i,4)} offset:{l-65536}")
    VK = T + 9; VV = T + 10
    a(f"v_lshlrev_b32 v{VK}, 15, v{T+6}")
    a(f"v_lshl_add_u32 v{VK}, v{T+5}, 4, v{VK}")
    a(f"v_and_b32 v{T+11}, 1, v{T+1}")
    a(f"v_mul_u32_u24 v{VV}, {32768+64}, v{T+11}")
    a(f"v_bfe_u32 v{T+11}, v{T+1}, 2, 2")
    a(f"v_lshl_add_u32 v{T+11}, v{T+6}, 2, v{T+11}")
    a(f"v_lshl_add_u32 v{VV}, v{T+11}, 4, v{VV}")
    a(f"v_bfe_u32 v{T+11}, v{T+1}, 1, 1")
    a(f"v_lshl_add_u32 v{VV}, v{T+11}, 3, v{VV}")
    a(f"v_add_u32 v{VV}, 65536, v{VV}")
    a(f"v_and_b32 v{T+11}, 3, v{T+1}")
    a(f"v_cmp_eq_u32 vcc, 0, v{T+11}")
    a(f"v_mov_b32 v{T+11}, {CB+8}")
    a(f"v_mov_b32 v{T+12}, {CB}")
    a("s_nop 0")
    a(f"v_cndmask_b32 v{T+11}, v{T+11}, v{T+12}, vcc")
    a(f"v_bfe_u32 v{T+12}, v{T+1}, 4, 1")
    a(f"v_cmp_eq_u32 vcc, 1, v{T+12}")
    a("s_nop 1")
    a(f"v_cndmask_b32 v{VV}, v{VV}, v{T+11}, vcc")
    VINC = T + 17
    a(f"v_mov_b32 v{VINC}, {U*512}")
    a(f"v_cndmask_b32 v{VINC}, v{VINC}, 0, vcc")
    a(f"v_mov_b32 v{VF}, 0x3f80")
    a(f"v_mov_b32 v{VF+1}, 0")
    a(f"v_mov_b32 v{VF+2}, 0")
    a(f"v_mov_b32 v{VF+3}, 0")
    a(f"v_add_u32 v{T+11}, {CB}, v{T+3}")
    a(f"v_cmp_gt_u32 vcc, 320, v{T}")
    a("s_and_saveexec_b64 s[20:21], vcc")
    a(f"ds_write_b128 v{T+11}, {vr(VF,4)}")
    a("s_mov_b64 exec, s[20:21]")
    M0 = T + 12; M1 = T + 13
    VKc = T + 14; VVc = T + 15
    S = [SA, SB]
    a("s_waitcnt vmcnt(16)")
    wave_max(a, KN)
    a(f"v_readlane_b32 s22, v{KN}, 63")
    a(f"v_mov_b32 v{M0}, 0")
    a("s_mov_b32 s23, 0xffff0000")
    for i in range(4):
        a(f"v_lshlrev_b32 v{M1}, 16, v{QF+i}")
        a(f"v_fmac_f32 v{M0}, v{M1}, v{M1}")
        a(f"v_and_b32 v{M1}, s23, v{QF+i}")
        a(f"v_fmac_f32 v{M0}, v{M1}, v{M1}")
    a(f"v_mov_b32 v{M1}, v{M0}")
    a("s_nop 1")
    a(f"v_permlane32_swap_b32 v{M0}, v{M1}")
    a("s_nop 1")
    a(f"v_add_f32 v{M0}, v{M0}, v{M1}")
    a(f"v_mul_f32 v{M0}, s22, v{M0}")
    a(f"v_sqrt_f32 v{M0}, v{M0}")
    a("s_nop 0")
    a(f"v_mul_f32 v{M0}, {hexf(-1.02)}, v{M0}")
    for r in range(16):
        a(f"v_mov_b32 v{NEGM+r}, v{M0}")
        a(f"v_mov_b32 v{OACC+r}, 0")
    for i in range(4):
        a(f"s_waitcnt vmcnt({15-i})")
        wr(i)
    a("s_waitcnt lgkmcnt(0)")
    stamp(a)
    a("s_barrier")
    stamp(a)

    def vread(dst, tile_off):
        for t16 in range(2):
            for i in range(2):
                a(f"ds_read_b64_tr_b16 {vr(dst+4*t16+2*i,2)}, v{VVc} offset:{tile_off + (16*t16+8*i)*16}")
    def pass2_pro():
        a(f"v_mov_b32 v{VKc}, v{VK}")
        a(f"v_mov_b32 v{VVc}, v{VV}")
        a(f"ds_read_b128 {vr(KF,4)}, v{VKc}")
        a(f"ds_read_b128 {vr(KF+4,4)}, v{VKc} offset:512")
        vread(VF, 0)
        a("s_waitcnt lgkmcnt(5)")
        a(f"v_mfma_f32_32x32x16_bf16 {vr(SA,16)}, {vr(KF,4)}, {vr(QF,4)}, {vr(NEGM,16)}")
        a.nop(8)
    def pass2_group():
        for u in range(U):
            b = u & 1
            a(f"ds_read_b128 {vr(KF+4*b,4)}, v{VKc} offset:{(u+2)*512}")
            vread(VF + 8 * (1 - b), (u + 1) * 512)
            a("s_waitcnt lgkmcnt(9)")
            a(f"v_mfma_f32_32x32x16_bf16 {vr(S[1-b],16)}, {vr(KF+4*(1-b),4)}, {vr(QF,4)}, {vr(NEGM,16)}")
            s = S[b]
            for hh in range(2):
                for i in range(8 * hh, 8 * hh + 8):
                    a(f"v_exp_f32 v{s+i}, v{s+i}")
                for i in range(4 * hh, 4 * hh + 4):
                    a(f"v_cvt_pk_bf16_f32 v{P+i}, v{s+2*i}, v{s+2*i+1}")
                if hh == 0:
                    a("s_waitcnt lgkmcnt(5)")
                    a("s_nop 0")
                else:
                    a("s_nop 1")
                a(f"v_mfma_f32_32x32x16_bf16 {vr(OACC,16)}, {vr(VF+8*b+4*hh,4)}, {vr(P+4*hh,4)}, {vr(OACC,16)}")
        a(f"v_add_u32 v{VKc}, {U*512}, v{VKc}")
        a(f"v_add_u32 v{VVc}, v{VINC}, v{VVc}")
    def pass2_loop(first):
        a(f"s_mov_b32 s17, {first}")
        lp2 = a.newlabel("at_p2")
        a.label(lp2)
        pass2_group()
        a(f"s_add_u32 s17, s17, {U}")
        a("s_cmp_lt_u32 s17, 64")
        a(f"s_cbranch_scc1 {lp2}")
        a("s_waitcnt lgkmcnt(0)")
        a.nop(16)
    pass2_pro()
    pass2_group()
    a("s_waitcnt vmcnt(0)")
    for i in range(4, 16):
        wr(i)
    a("s_waitcnt lgkmcnt(0)")
    a("s_barrier")
    pass2_loop(U)
    stamp(a)
    lfin = a.newlabel("at_fin")
    a(f"v_mov_b32 v{M0}, v{OACC+8}")
    a(f"v_mov_b32 v{M1}, v{OACC+8}")
    a("s_nop 1")
    a(f"v_permlane32_swap_b32 v{M0}, v{M1}")
    a("s_nop 1")
    a(f"v_cmp_nle_f32 vcc, {hexf(2.0**-64)}, v{M0}")
    if force_slow:
        a("s_cmp_eq_u32 s0, s0")
        a(f"s_cbranch_scc0 {lfin}")
    else:
        a("s_nop 1")
        a(f"s_cbranch_vccz {lfin}")
    a(f"v_mov_b32 v{M0}, 0xff800000")
    a(f"v_mov_b32 v{M1}, 0xff800000")
    a(f"v_mov_b32 v{VKc}, v{VK}")
    a(f"ds_read_b128 {vr(KF,4)}, v{VKc}")
    a(f"ds_read_b128 {vr(KF+4,4)}, v{VKc} offset:512")
    a("s_waitcnt lgkmcnt(1)")
    a(f"v_mfma_f32_32x32x16_bf16 {vr(SA,16)}, {vr(KF,4)}, {vr(QF,4)}, 0")
    a("s_mov_b32 s17, 0")
    a.nop(8)
    lp1 = a.newlabel("at_p1")
    a.label(lp1)
    for u in range(U):
        a(f"ds_read_b128 {vr(KF+4*(u&1),4)}, v{VKc} offset:{(u+2)*512}")
        a("s_waitcnt lgkmcnt(1)")
        a(f"v_mfma_f32_32x32x16_bf16 {vr(S[(u+1)&1],16)}, {vr(KF+4*((u+1)&1),4)}, {vr(QF,4)}, 0")
        a("s_nop 1")
        s = S[u & 1]
        for i in range(4):
            a(f"v_max3_f32 v{M0}, v{s+4*i}, v{s+4*i+1}, v{M0}")
            a(f"v_max3_f32 v{M1}, v{s+4*i+2}, v{s+4*i+3}, v{M1}")
    a(f"v_add_u32 v{VKc}, {U*512}, v{VKc}")
    a(f"s_add_u32 s17, s17, {U}")
    a("s_cmp_lt_u32 s17, 64")
    a(f"s_cbranch_scc1 {lp1}")
    a(f"v_max_f32 v{M0}, v{M0}, v{M1}")
    a(f"v_mov_b32 v{M1}, v{M0}")
    a("s_nop 1")
    a(f"v_permlane32_swap_b32 v{M0}, v{M1}")
    a("s_nop 1")
    a(f"v_max_f32 v{M0}, v{M0}, v{M1}")
    a("s_waitcnt lgkmcnt(0)")
    a.nop(12)
    for r in range(16):
        a(f"v_sub_f32 v{NEGM+r}, 0, v{M0}")
        a(f"v_mov_b32 v{OACC+r}, 0")
    pass2_pro()
    pass2_loop(0)
    a(f"v_mov_b32 v{M0}, v{OACC+8}")
    a(f"v_mov_b32 v{M1}, v{OACC+8}")
    a("s_nop 1")
    a(f"v_permlane32_swap_b32 v{M0}, v{M1}")
    a("s_nop 1")
    a.label(lfin)
    a(f"v_rcp_f32 v{M0}, v{M0}")
    a("s_nop 1")
    for r in range(8):
        a(f"v_mul_f32 v{OACC+r}, v{OACC+r}, v{M0}")
    for i in range(4):
        a(f"v_cvt_pk_bf16_f32 v{P+i}, v{OACC+2*i}, v{OACC+2*i+1}")
    a(f"s_add_u32 s14, s13, {WS_O}")
    a(f"buffer_store_dwordx4 {vr(P,4)}, v{T+8}, s[24:27], s14 offen")
    a("s_waitcnt vmcnt(0)") if STAMP["on"] else None
    stamp(a)
    a.label(end)
```

```python
from asmlib import *
from k_gemm import WS_Q, WS_K, WS_V, WS_O, WS_KN, WS_TOTAL
from k_attn import wave_max

ATTN_VGPR = 128
ATTN_BLOCK = 1024
VH1 = 65536 + 32768 + 64
CB = 131072 + 1024
MRG = 139264
FLG = MRG + 18432
ATTN_LDS = FLG + 4096 + 64

def gen_attn(a, wg_base=0, U=8, force_slow=False):
    end = a.newlabel("at_end")
    if wg_base:
        a(f"s_sub_u32 s2, s2, {wg_base}")
    a("s_cmp_ge_u32 s2, 256")
    a(f"s_cbranch_scc1 {end}")
    stamp_init(a)
    a("s_load_dwordx2 s[8:9], s[0:1], 96")
    a("s_and_b32 s10, s2, 7")
    a("s_lshl_b32 s10, s10, 2")
    a("s_bfe_u32 s11, s2, 0x20003")
    a("s_add_u32 s10, s10, s11")
    a("s_lshr_b32 s11, s2, 5")
    SA = 0; SB = 16; NEGM = 32; OACC = 48
    QF = 64; KF = 68; VF = 76; P = 92
    T = 100
    a(f"v_mov_b32 v{T}, v0")
    a(f"v_and_b32 v{T+1}, 63, v{T}")
    a(f"v_lshrrev_b32 v{T+2}, 6, v{T}")
    a("s_nop 0")
    a(f"v_readfirstlane_b32 s12, v{T+2}")
    a("s_waitcnt lgkmcnt(0)")
    srd(a, 24, 8, WS_TOTAL)
    a("s_lshl_b32 s13, s10, 16")
    a("s_and_b32 s18, s12, 7")
    a("s_lshr_b32 s19, s12, 3")
    a(f"v_and_b32 v{T+5}, 31, v{T+1}")
    a(f"v_lshrrev_b32 v{T+6}, 5, v{T+1}")
    a("s_lshl_b32 s15, s11, 8")
    a("s_lshl_b32 s16, s18, 5")
    a("s_add_u32 s15, s15, s16")
    a(f"v_add_u32 v{T+7}, s15, v{T+5}")
    a(f"v_lshlrev_b32 v{T+8}, 15, v{T+6}")
    a(f"v_lshl_add_u32 v{T+8}, v{T+7}, 4, v{T+8}")
    a(f"s_add_u32 s14, s13, {WS_Q}")
    a(f"buffer_load_dwordx4 {vr(QF,4)}, v{T+8}, s[24:27], s14 offen")
    KN = T + 16
    a(f"v_lshlrev_b32 v{T+4}, 2, v{T+1}")
    a("s_lshl_b32 s14, s10, 8")
    a(f"s_add_u32 s14, s14, {WS_KN}")
    a(f"buffer_load_dword v{KN}, v{T+4}, s[24:27], s14 offen")
    a("s_and_b32 s28, s12, 1")
    a("s_lshl_b32 s28, s28, 15")
    a("s_bfe_u32 s29, s12, 0x10001")
    a("s_bfe_u32 s30, s12, 0x10002")
    a("s_lshl_b32 s30, s30, 14")
    a("s_lshl_b32 s31, s19, 10")
    a("s_add_u32 s30, s30, s31")
    a("s_add_u32 s30, s30, s28")
    a(f"s_mul_i32 s31, s29, {WS_V - WS_K}")
    a("s_add_u32 s31, s31, s30")
    a("s_add_u32 s31, s31, s13")
    a(f"s_add_u32 s31, s31, {WS_K}")
    a("s_lshl_b32 s32, s29, 16")
    a("s_add_u32 s32, s32, s30")
    a("s_and_b32 s33, s12, 3")
    a("s_cmp_eq_u32 s33, 3")
    a("s_cselect_b32 s33, 64, 0")
    a("s_add_u32 s32, s32, s33")
    a(f"v_lshlrev_b32 v{T+3}, 4, v{T+1}")
    for r in range(8):
        a(f"s_add_u32 m0, s32, {2048*r}")
        a(f"s_add_u32 s33, s31, {2048*r}")
        a(f"buffer_load_dwordx4 v{T+3}, s[24:27], s33 offen lds")
    VK = T + 9; VV = T + 10
    a("s_lshl_b32 s33, s19, 14")
    a(f"v_lshlrev_b32 v{VK}, 15, v{T+6}")
    a(f"v_lshl_add_u32 v{VK}, v{T+5}, 4, v{VK}")
    a(f"v_add_u32 v{VK}, s33, v{VK}")
    a(f"v_and_b32 v{T+11}, 1, v{T+1}")
    a(f"v_mul_u32_u24 v{VV}, {32768+64}, v{T+11}")
    a(f"v_bfe_u32 v{T+11}, v{T+1}, 2, 2")
    a(f"v_lshl_add_u32 v{T+11}, v{T+6}, 2, v{T+11}")
    a(f"v_lshl_add_u32 v{VV}, v{T+11}, 4, v{VV}")
    a(f"v_bfe_u32 v{T+11}, v{T+1}, 1, 1")
    a(f"v_lshl_add_u32 v{VV}, v{T+11}, 3, v{VV}")
    a(f"s_add_u32 s33, s33, 65536")
    a(f"v_add_u32 v{VV}, s33, v{VV}")
    a(f"v_and_b32 v{T+11}, 3, v{T+1}")
    a(f"v_cmp_eq_u32 vcc, 0, v{T+11}")
    a(f"v_mov_b32 v{T+11}, {CB+8}")
    a(f"v_mov_b32 v{T+12}, {CB}")
    a("s_nop 0")
    a(f"v_cndmask_b32 v{T+11}, v{T+11}, v{T+12}, vcc")
    a(f"v_bfe_u32 v{T+12}, v{T+1}, 4, 1")
    a(f"v_cmp_eq_u32 vcc, 1, v{T+12}")
    a("s_nop 1")
    a(f"v_cndmask_b32 v{VV}, v{VV}, v{T+11}, vcc")
    VINC = T + 17
    a(f"v_mov_b32 v{VINC}, {U*512}")
    a(f"v_cndmask_b32 v{VINC}, v{VINC}, 0, vcc")
    a(f"v_mov_b32 v{VF}, 0x3f80")
    a(f"v_mov_b32 v{VF+1}, 0")
    a(f"v_mov_b32 v{VF+2}, 0")
    a(f"v_mov_b32 v{VF+3}, 0")
    a(f"v_lshlrev_b32 v{T+11}, 4, v{T}")
    a(f"v_add_u32 v{T+11}, {CB}, v{T+11}")
    a(f"v_cmp_gt_u32 vcc, 320, v{T}")
    a("s_and_saveexec_b64 s[20:21], vcc")
    a(f"ds_write_b128 v{T+11}, {vr(VF,4)}")
    a("s_mov_b64 exec, s[20:21]")
    FA = T + 18
    a(f"v_mov_b32 v{FA}, {FLG+4096}")
    a(f"ds_write_b32 v{FA}, v{VF+1}")
    M0 = T + 12; M1 = T + 13
    VKc = T + 14; VVc = T + 15
    MA = T + 19
    a("s_mul_i32 s33, s18, 2304")
    a(f"s_add_u32 s33, s33, {MRG}")
    a(f"v_lshlrev_b32 v{MA}, 2, v{T+1}")
    a(f"v_add_u32 v{MA}, s33, v{MA}")
    S = [SA, SB]
    a("s_waitcnt vmcnt(8)")
    wave_max(a, KN)
    a(f"v_readlane_b32 s22, v{KN}, 63")
    a(f"v_mov_b32 v{M0}, 0")
    a("s_mov_b32 s23, 0xffff0000")
    for i in range(4):
        a(f"v_lshlrev_b32 v{M1}, 16, v{QF+i}")
        a(f"v_fmac_f32 v{M0}, v{M1}, v{M1}")
        a(f"v_and_b32 v{M1}, s23, v{QF+i}")
        a(f"v_fmac_f32 v{M0}, v{M1}, v{M1}")
    a(f"v_mov_b32 v{M1}, v{M0}")
    a("s_nop 1")
    a(f"v_permlane32_swap_b32 v{M0}, v{M1}")
    a("s_nop 1")
    a(f"v_add_f32 v{M0}, v{M0}, v{M1}")
    a(f"v_mul_f32 v{M0}, s22, v{M0}")
    a(f"v_sqrt_f32 v{M0}, v{M0}")
    a("s_nop 0")
    a(f"v_mul_f32 v{M0}, {hexf(-1.02)}, v{M0}")
    for r in range(16):
        a(f"v_mov_b32 v{NEGM+r}, v{M0}")
        a(f"v_mov_b32 v{OACC+r}, 0")
    a("s_waitcnt vmcnt(5) lgkmcnt(0)")
    stamp(a)
    a("s_barrier")
    stamp(a)
    NT = 32
    def vread(dst, tile_off):
        for t16 in range(2):
            for i in range(2):
                a(f"ds_read_b64_tr_b16 {vr(dst+4*t16+2*i,2)}, v{VVc} offset:{tile_off + (16*t16+8*i)*16}")
    def pass2_pro():
        a(f"v_mov_b32 v{VKc}, v{VK}")
        a(f"v_mov_b32 v{VVc}, v{VV}")
        a(f"ds_read_b128 {vr(KF,4)}, v{VKc}")
        a(f"ds_read_b128 {vr(KF+4,4)}, v{VKc} offset:512")
        vread(VF, 0)
        a("s_waitcnt lgkmcnt(5)")
        a(f"v_mfma_f32_32x32x16_bf16 {vr(SA,16)}, {vr(KF,4)}, {vr(QF,4)}, {vr(NEGM,16)}")
        a.nop(8)
    def pass2_group():
        for u in range(U):
            b = u & 1
            a(f"ds_read_b128 {vr(KF+4*b,4)}, v{VKc} offset:{(u+2)*512}")
            vread(VF + 8 * (1 - b), (u + 1) * 512)
            a("s_waitcnt lgkmcnt(9)")
            a(f"v_mfma_f32_32x32x16_bf16 {vr(S[1-b],16)}, {vr(KF+4*(1-b),4)}, {vr(QF,4)}, {vr(NEGM,16)}")
            s = S[b]
            for hh in range(2):
                for i in range(8 * hh, 8 * hh + 8):
                    a(f"v_exp_f32 v{s+i}, v{s+i}")
                for i in range(4 * hh, 4 * hh + 4):
                    a(f"v_cvt_pk_bf16_f32 v{P+i}, v{s+2*i}, v{s+2*i+1}")
                if hh == 0:
                    a("s_waitcnt lgkmcnt(5)")
                    a("s_nop 0")
                else:
                    a("s_nop 1")
                a(f"v_mfma_f32_32x32x16_bf16 {vr(OACC,16)}, {vr(VF+8*b+4*hh,4)}, {vr(P+4*hh,4)}, {vr(OACC,16)}")
        a(f"v_add_u32 v{VKc}, {U*512}, v{VKc}")
        a(f"v_add_u32 v{VVc}, v{VINC}, v{VVc}")
    def pass2_loop(first):
        a(f"s_mov_b32 s17, {first}")
        lp2 = a.newlabel("at_p2")
        a.label(lp2)
        pass2_group()
        a(f"s_add_u32 s17, s17, {U}")
        a(f"s_cmp_lt_u32 s17, {NT}")
        a(f"s_cbranch_scc1 {lp2}")
        a("s_waitcnt lgkmcnt(0)")
        a.nop(16)
    def merge():
        l1 = a.newlabel("at_m1"); l2 = a.newlabel("at_m2")
        a("s_cmp_eq_u32 s19, 0")
        a(f"s_cbranch_scc1 {l1}")
        for r in range(9):
            a(f"ds_write_b32 v{MA}, v{OACC+r} offset:{r*256}")
        a("s_waitcnt lgkmcnt(0)")
        a.label(l1)
        a("s_barrier")
        a("s_cmp_eq_u32 s19, 1")
        a(f"s_cbranch_scc1 {l2}")
        for r in range(9):
            a(f"ds_read_b32 v{SA+r}, v{MA} offset:{r*256}")
        a("s_waitcnt lgkmcnt(0)")
        for r in range(9):
            a(f"v_add_f32 v{OACC+r}, v{OACC+r}, v{SA+r}")
        a(f"v_mov_b32 v{M0}, v{OACC+8}")
        a(f"v_mov_b32 v{M1}, v{OACC+8}")
        a("s_nop 1")
        a(f"v_permlane32_swap_b32 v{M0}, v{M1}")
        a("s_nop 1")
        a.label(l2)
    pass2_pro()
    pass2_group()
    a("s_waitcnt vmcnt(0) lgkmcnt(0)")
    a("s_barrier")
    pass2_loop(U)
    stamp(a)
    merge()
    lchk = a.newlabel("at_chk")
    a("s_cmp_eq_u32 s19, 1")
    a(f"s_cbranch_scc1 {lchk}")
    a(f"v_cmp_nle_f32 vcc, {hexf(2.0**-64)}, v{M0}")
    if force_slow:
        a("s_mov_b64 vcc, -1")
    a("s_nop 1")
    a(f"s_cbranch_vccz {lchk}")
    a(f"v_mov_b32 v{M1}, 1")
    a(f"ds_write_b32 v{FA}, v{M1}")
    a("s_waitcnt lgkmcnt(0)")
    a.label(lchk)
    a("s_barrier")
    a(f"ds_read_b32 v{M1}, v{FA}")
    a("s_waitcnt lgkmcnt(0)")
    a(f"v_readfirstlane_b32 s33, v{M1}")
    lfin = a.newlabel("at_fin")
    a("s_nop 3")
    a("s_cmp_eq_u32 s33, 0")
    a(f"s_cbranch_scc1 {lfin}")
    a(f"v_mov_b32 v{M0}, 0xff800000")
    a(f"v_mov_b32 v{M1}, 0xff800000")
    a(f"v_mov_b32 v{VKc}, v{VK}")
    a(f"ds_read_b128 {vr(KF,4)}, v{VKc}")
    a(f"ds_read_b128 {vr(KF+4,4)}, v{VKc} offset:512")
    a("s_waitcnt lgkmcnt(1)")
    a(f"v_mfma_f32_32x32x16_bf16 {vr(SA,16)}, {vr(KF,4)}, {vr(QF,4)}, 0")
    a("s_mov_b32 s17, 0")
    a.nop(8)
    lp1 = a.newlabel("at_p1")
    a.label(lp1)
    for u in range(U):
        a(f"ds_read_b128 {vr(KF+4*(u&1),4)}, v{VKc} offset:{(u+2)*512}")
        a("s_waitcnt lgkmcnt(1)")
        a(f"v_mfma_f32_32x32x16_bf16 {vr(S[(u+1)&1],16)}, {vr(KF+4*((u+1)&1),4)}, {vr(QF,4)}, 0")
        a("s_nop 1")
        s = S[u & 1]
        for i in range(4):
            a(f"v_max3_f32 v{M0}, v{s+4*i}, v{s+4*i+1}, v{M0}")
            a(f"v_max3_f32 v{M1}, v{s+4*i+2}, v{s+4*i+3}, v{M1}")
    a(f"v_add_u32 v{VKc}, {U*512}, v{VKc}")
    a(f"s_add_u32 s17, s17, {U}")
    a(f"s_cmp_lt_u32 s17, {NT}")
    a(f"s_cbranch_scc1 {lp1}")
    a(f"v_max_f32 v{M0}, v{M0}, v{M1}")
    a(f"v_mov_b32 v{M1}, v{M0}")
    a("s_nop 1")
    a(f"v_permlane32_swap_b32 v{M0}, v{M1}")
    a("s_nop 1")
    a(f"v_max_f32 v{M0}, v{M0}, v{M1}")
    a("s_lshl_b32 s33, s12, 8")
    a(f"s_add_u32 s33, s33, {FLG}")
    a(f"v_lshlrev_b32 v{T+11}, 2, v{T+1}")
    a(f"v_add_u32 v{T+4}, s33, v{T+11}")
    a(f"ds_write_b32 v{T+4}, v{M0}")
    a("s_xor_b32 s33, s12, 8")
    a("s_lshl_b32 s33, s33, 8")
    a(f"s_add_u32 s33, s33, {FLG}")
    a(f"v_add_u32 v{T+4}, s33, v{T+11}")
    a("s_waitcnt lgkmcnt(0)")
    a("s_barrier")
    a(f"ds_read_b32 v{M1}, v{T+4}")
    a("s_waitcnt lgkmcnt(0)")
    a(f"v_max_f32 v{M0}, v{M0}, v{M1}")
    a.nop(4)
    for r in range(16):
        a(f"v_sub_f32 v{NEGM+r}, 0, v{M0}")
        a(f"v_mov_b32 v{OACC+r}, 0")
    pass2_pro()
    pass2_loop(0)
    merge()
    a.label(lfin)
    a("s_cmp_eq_u32 s19, 1")
    a(f"s_cbranch_scc1 {end}")
    a(f"v_rcp_f32 v{M0}, v{M0}")
    a("s_nop 1")
    for r in range(8):
        a(f"v_mul_f32 v{OACC+r}, v{OACC+r}, v{M0}")
    for i in range(4):
        a(f"v_cvt_pk_bf16_f32 v{P+i}, v{OACC+2*i}, v{OACC+2*i+1}")
    a(f"s_add_u32 s14, s13, {WS_O}")
    a(f"buffer_store_dwordx4 {vr(P,4)}, v{T+8}, s[24:27], s14 offen")
    a("s_waitcnt vmcnt(0)") if STAMP["on"] else None
    stamp(a)
    a.label(end)
```

```python
from asmlib import *
import math

MB = 1 << 20
WS_Q = 0
WS_K = 2 * MB
WS_V = 4 * MB
WS_O = 6 * MB
WS_KN = 8 * MB
WS_TOTAL = 9 * MB

QSCALE = 0.25 * math.log2(math.e)

def gen_qkv(a, name="qkv_kernel", wg_base=0, exit_label=None):
    end = a.newlabel("qkv_end")
    if wg_base:
        a(f"s_sub_u32 s2, s2, {wg_base}")
    a("s_cmp_ge_u32 s2, 384")
    a(f"s_cbranch_scc1 {end}")
    stamp_init(a)
    a("s_load_dwordx2 s[4:5], s[0:1], 56")
    a("s_load_dwordx2 s[6:7], s[0:1], 64")
    a("s_load_dwordx2 s[8:9], s[0:1], 96")
    import os
    MAP = os.environ.get("QKV_MAP", "18")
    if MAP == "18":
        a("s_lshr_b32 s13, s2, 3")
        a("s_and_b32 s10, s13, 15")
        a("s_lshr_b32 s13, s13, 4")
        a("s_lshl_b32 s13, s13, 3")
        a("s_and_b32 s11, s2, 7")
        a("s_add_u32 s11, s11, s13")
    elif MAP == "81":
        a("s_and_b32 s10, s2, 15")
        a("s_lshr_b32 s11, s2, 4")
    elif MAP == "42":
        a("s_and_b32 s13, s2, 3")
        a("s_lshl_b32 s13, s13, 2")
        a("s_bfe_u32 s10, s2, 0x20003")
        a("s_add_u32 s10, s10, s13")
        a("s_bfe_u32 s13, s2, 0x10002")
        a("s_mul_i32 s13, s13, 12")
        a("s_lshr_b32 s11, s2, 5")
        a("s_add_u32 s11, s11, s13")
    XA = 0
    WST = 128
    ACC = 192
    WF = 224
    T = 240
    a(f"v_mov_b32 v{T}, v0")
    a(f"v_and_b32 v{T+1}, 63, v{T}")
    a(f"v_lshrrev_b32 v{T+2}, 6, v{T}")
    a("s_nop 0")
    a(f"v_readfirstlane_b32 s12, v{T+2}")
    a("s_waitcnt lgkmcnt(0)")
    srd(a, 16, 4, 2 * MB)
    srd(a, 20, 6, 512 * 1536 * 2)
    srd(a, 24, 8, WS_TOTAL)
    a(f"v_lshrrev_b32 v{T+3}, 3, v{T}")
    a(f"v_mul_u32_u24 v{T+3}, 3072, v{T+3}")
    a(f"v_and_b32 v{T+4}, 7, v{T}")
    a(f"v_lshlrev_b32 v{T+5}, 4, v{T+4}")
    a(f"v_add_u32 v{T+3}, v{T+3}, v{T+5}")
    a("s_lshl_b32 s13, s11, 7")
    a(f"v_add_u32 v{T+3}, s13, v{T+3}")
    a("s_mov_b32 s14, 0")
    for it in range(16):
        a(f"buffer_load_dwordx4 {vr(WST+4*it,4)}, v{T+3}, s[20:23], s14 offen")
        if it < 15:
            a("s_add_u32 s14, s14, 98304")
    a(f"v_and_b32 v{T+5}, 31, v{T+1}")
    a(f"v_lshrrev_b32 v{T+6}, 5, v{T+1}")
    a("s_lshl_b32 s13, s10, 7")
    a("s_lshl_b32 s15, s12, 5")
    a("s_add_u32 s13, s13, s15")
    a(f"v_add_u32 v{T+7}, s13, v{T+5}")
    a(f"v_lshlrev_b32 v{T+8}, 10, v{T+7}")
    a(f"v_lshl_add_u32 v{T+8}, v{T+6}, 5, v{T+8}")
    for kc in range(16):
        a(f"buffer_load_dwordx4 {vr(XA+8*kc,4)}, v{T+8}, s[16:19], 0 offen offset:{kc*64}")
        a(f"buffer_load_dwordx4 {vr(XA+8*kc+4,4)}, v{T+8}, s[16:19], 0 offen offset:{kc*64+16}")
    a(f"v_lshrrev_b32 v{T+9}, 3, v{T}")
    a(f"v_lshlrev_b32 v{T+9}, 7, v{T+9}")
    a(f"v_lshrrev_b32 v{T+10}, 2, v{T+4}")
    a(f"v_bfe_u32 v{T+11}, v{T}, 4, 1")
    a(f"v_xor_b32 v{T+10}, v{T+10}, v{T+11}")
    a(f"v_lshl_add_u32 v{T+9}, v{T+10}, 6, v{T+9}")
    a(f"v_and_b32 v{T+10}, 3, v{T}")
    a(f"v_lshl_add_u32 v{T+9}, v{T+10}, 4, v{T+9}")
    for it in range(16):
        a(f"s_waitcnt vmcnt({32 + 15 - it})")
        a(f"ds_write_b128 v{T+9}, {vr(WST+4*it,4)} offset:{it*4096}")
    a(f"v_bfe_u32 v{T+10}, v{T+1}, 2, 2")
    a(f"v_lshl_add_u32 v{T+11}, v{T+6}, 4, v{T+10}")
    a(f"v_lshlrev_b32 v{T+11}, 7, v{T+11}")
    a(f"v_bfe_u32 v{T+12}, v{T+1}, 4, 1")
    a(f"v_lshl_add_u32 v{T+11}, v{T+12}, 5, v{T+11}")
    a(f"v_and_b32 v{T+12}, 3, v{T+1}")
    a(f"v_lshl_add_u32 v{T+11}, v{T+12}, 3, v{T+11}")
    a(f"v_lshrrev_b32 v{T+12}, 1, v{T+10}")
    a(f"v_lshl_add_u32 v{T+11}, v{T+12}, 6, v{T+11}")
    a(f"v_xor_b32 v{T+12}, 64, v{T+11}")
    VW = [T+11, T+12]
    for r in range(32):
        a(f"v_mov_b32 v{ACC+r}, 0")
    stamp(a)
    a("s_waitcnt lgkmcnt(0)")
    a("s_barrier")
    stamp(a)
    a("s_lshr_b32 s28, s11, 3")
    a("s_cmp_eq_u32 s28, 2")
    lblV = a.newlabel("qkv_vpath")
    lblEp = a.newlabel("qkv_ep")
    a(f"s_cbranch_scc1 {lblV}")
    def mainloop(transposed):
        steps = [(kc, st) for kc in range(16) for st in range(2)]
        def rd(idx):
            kc, st = steps[idx]
            buf = idx & 1
            off = (32 * kc + 8 * st) * 128
            for ct in range(2):
                base = WF + buf * 8 + ct * 4
                a(f"ds_read_b64_tr_b16 {vr(base,2)}, v{VW[ct]} offset:{off}")
                a(f"ds_read_b64_tr_b16 {vr(base+2,2)}, v{VW[ct]} offset:{off+512}")
        rd(0)
        for idx in range(32):
            kc, st = steps[idx]
            if idx + 1 < 32:
                rd(idx + 1)
                a(f"s_waitcnt vmcnt({2*(15-kc)}) lgkmcnt(4)")
            else:
                a(f"s_waitcnt vmcnt(0) lgkmcnt(0)")
            buf = idx & 1
            xa = XA + 8 * kc + 4 * st
            for ct in range(2):
                wf = WF + buf * 8 + ct * 4
                acc = vr(ACC + 16 * ct, 16)
                if transposed:
                    a(f"v_mfma_f32_32x32x16_bf16 {acc}, {vr(wf,4)}, {vr(xa,4)}, {acc}")
                else:
                    a(f"v_mfma_f32_32x32x16_bf16 {acc}, {vr(xa,4)}, {vr(wf,4)}, {acc}")
    mainloop(True)
    a.nop(16)
    stamp(a)
    a(f"s_mov_b32 s29, {hexf(QSCALE)}")
    a("s_cmp_eq_u32 s28, 0")
    a("s_cselect_b32 s29, s29, 1.0")
    for r in range(32):
        a(f"v_mul_f32 v{ACC+r}, s29, v{ACC+r}")
    lblNK = a.newlabel("qkv_nok")
    a("s_cmp_lg_u32 s28, 1")
    a(f"s_cbranch_scc1 {lblNK}")
    from k_attn import wave_max
    a("s_and_b32 s30, s11, 7")
    a("s_lshl_b32 s30, s30, 10")
    a("s_lshr_b32 s31, s13, 3")
    a("s_add_u32 s30, s30, s31")
    a(f"s_add_u32 s30, s30, {WS_KN}")
    for hq in range(4):
        src = ACC + 8 * hq
        q = XA + 2 * hq
        a(f"v_mul_f32 v{q}, v{src}, v{src}")
        for i in range(1, 8):
            a(f"v_fmac_f32 v{q}, v{src+i}, v{src+i}")
        a(f"v_mov_b32 v{q+1}, v{q}")
        a("s_nop 1")
        a(f"v_permlane32_swap_b32 v{q}, v{q+1}")
        a("s_nop 1")
        a(f"v_add_f32 v{q}, v{q}, v{q+1}")
        wave_max(a, q)
    a(f"v_mov_b32 v{XA+8}, 0")
    a("s_mov_b32 s32, 0")
    a("s_mov_b32 s33, 0x80000000")
    a("s_mov_b64 exec, s[32:33]")
    for hq in range(4):
        a(f"buffer_store_dword v{XA+2*hq}, v{XA+8}, s[24:27], s30 offen offset:{hq*256}")
    a("s_mov_b64 exec, -1")
    a.label(lblNK)
    a("s_and_b32 s30, s11, 7")
    a("s_lshl_b32 s30, s30, 2")
    a("s_lshl_b32 s30, s30, 16")
    a(f"s_lshl_b32 s31, s28, 21")
    a("s_add_u32 s30, s30, s31")
    a(f"v_lshlrev_b32 v{T+13}, 15, v{T+6}")
    a(f"v_lshl_add_u32 v{T+13}, v{T+7}, 4, v{T+13}")
    a(f"v_add_u32 v{T+13}, s30, v{T+13}")
    for ct in range(2):
        for hl in range(2):
            src = ACC + 16 * ct + 8 * hl
            dst = XA + (ct * 2 + hl) * 4
            for i in range(4):
                a(f"v_cvt_pk_bf16_f32 v{dst+i}, v{src+2*i}, v{src+2*i+1}")
            a(f"s_mov_b32 s31, {(2*ct+hl)*65536}")
            a(f"buffer_store_dwordx4 {vr(dst,4)}, v{T+13}, s[24:27], s31 offen")
    a("s_waitcnt vmcnt(0)") if STAMP["on"] else None
    stamp(a)
    a(f"s_branch {end}")
    a.label(lblV)
    mainloop(False)
    a.nop(16)
    a("s_and_b32 s30, s11, 7")
    a("s_lshl_b32 s30, s30, 2")
    a("s_lshl_b32 s30, s30, 16")
    a(f"s_add_u32 s30, s30, {WS_V}")
    a("s_lshl_b32 s31, s13, 5")
    a("s_add_u32 s30, s30, s31")
    a(f"v_bfe_u32 v{T+13}, v{T+1}, 4, 1")
    a(f"v_lshlrev_b32 v{T+13}, 16, v{T+13}")
    a(f"v_lshl_add_u32 v{T+13}, v{T+6}, 8, v{T+13}")
    a(f"v_and_b32 v{T+14}, 15, v{T+1}")
    a(f"v_lshl_add_u32 v{T+13}, v{T+14}, 4, v{T+13}")
    a(f"v_add_u32 v{T+13}, s30, v{T+13}")
    for ct in range(2):
        for t16 in range(2):
            src = ACC + 16 * ct + 8 * t16
            dst = XA + (ct * 2 + t16) * 4
            for i in range(4):
                a(f"v_cvt_pk_bf16_f32 v{dst+i}, v{src+2*i}, v{src+2*i+1}")
            a(f"s_mov_b32 s31, {2*ct*65536}")
            a(f"buffer_store_dwordx4 {vr(dst,4)}, v{T+13}, s[24:27], s31 offen offset:{t16*512}")
    a.label(end)


def gen_oproj(a, wg_base=0):
    end = a.newlabel("op_end")
    if wg_base:
        a(f"s_sub_u32 s2, s2, {wg_base}")
    a("s_cmp_ge_u32 s2, 256")
    a(f"s_cbranch_scc1 {end}")
    stamp_init(a)
    a("s_load_dwordx2 s[4:5], s[0:1], 80")
    a("s_load_dwordx2 s[6:7], s[0:1], 72")
    a("s_load_dwordx2 s[8:9], s[0:1], 96")
    a("s_and_b32 s10, s2, 31")
    a("s_lshr_b32 s11, s2, 5")
    XA = 0; WST = 128; ACC = 192; WF = 224; T = 240
    a(f"v_mov_b32 v{T}, v0")
    a(f"v_and_b32 v{T+1}, 63, v{T}")
    a(f"v_lshrrev_b32 v{T+2}, 6, v{T}")
    a("s_nop 0")
    a(f"v_readfirstlane_b32 s12, v{T+2}")
    a("s_waitcnt lgkmcnt(0)")
    srd(a, 16, 4, 2048 * 1024 * 2)
    srd(a, 20, 6, 512 * 512 * 2)
    srd(a, 24, 8, WS_TOTAL)
    a(f"v_lshrrev_b32 v{T+3}, 3, v{T}")
    a(f"v_lshlrev_b32 v{T+3}, 10, v{T+3}")
    a(f"v_and_b32 v{T+4}, 7, v{T}")
    a(f"v_lshl_add_u32 v{T+3}, v{T+4}, 4, v{T+3}")
    a("s_lshl_b32 s13, s11, 7")
    a(f"v_add_u32 v{T+3}, s13, v{T+3}")
    a("s_mov_b32 s14, 0")
    for it in range(16):
        a(f"buffer_load_dwordx4 {vr(WST+4*it,4)}, v{T+3}, s[20:23], s14 offen")
        if it < 15:
            a("s_add_u32 s14, s14, 32768")
    a(f"v_and_b32 v{T+5}, 31, v{T+1}")
    a(f"v_lshrrev_b32 v{T+6}, 5, v{T+1}")
    a("s_lshl_b32 s13, s10, 6")
    a("s_lshr_b32 s15, s12, 1")
    a("s_lshl_b32 s15, s15, 5")
    a("s_add_u32 s13, s13, s15")
    a("s_and_b32 s28, s12, 1")
    a(f"v_add_u32 v{T+7}, s13, v{T+5}")
    a(f"v_lshlrev_b32 v{T+8}, 15, v{T+6}")
    a(f"v_lshl_add_u32 v{T+8}, v{T+7}, 4, v{T+8}")
    a(f"s_mov_b32 s14, {WS_O}")
    for h in range(32):
        a(f"buffer_load_dwordx4 {vr(XA+4*h,4)}, v{T+8}, s[24:27], s14 offen")
        if h < 31:
            a("s_add_u32 s14, s14, 65536")
    a(f"v_lshrrev_b32 v{T+9}, 3, v{T}")
    a(f"v_lshlrev_b32 v{T+9}, 7, v{T+9}")
    a(f"v_lshrrev_b32 v{T+10}, 2, v{T+4}")
    a(f"v_bfe_u32 v{T+11}, v{T}, 4, 1")
    a(f"v_xor_b32 v{T+10}, v{T+10}, v{T+11}")
    a(f"v_lshl_add_u32 v{T+9}, v{T+10}, 6, v{T+9}")
    a(f"v_and_b32 v{T+10}, 3, v{T}")
    a(f"v_lshl_add_u32 v{T+9}, v{T+10}, 4, v{T+9}")
    for it in range(16):
        a(f"s_waitcnt vmcnt({32 + 15 - it})")
        a(f"ds_write_b128 v{T+9}, {vr(WST+4*it,4)} offset:{it*4096}")
    a(f"v_bfe_u32 v{T+10}, v{T+1}, 2, 2")
    a(f"v_lshl_add_u32 v{T+11}, v{T+6}, 2, v{T+10}")
    a(f"v_lshlrev_b32 v{T+11}, 7, v{T+11}")
    a(f"v_bfe_u32 v{T+12}, v{T+1}, 4, 1")
    a(f"v_lshl_add_u32 v{T+11}, v{T+12}, 5, v{T+11}")
    a(f"v_and_b32 v{T+12}, 3, v{T+1}")
    a(f"v_lshl_add_u32 v{T+11}, v{T+12}, 3, v{T+11}")
    a(f"v_lshrrev_b32 v{T+12}, 1, v{T+10}")
    a(f"v_xor_b32 v{T+12}, s28, v{T+12}")
    a(f"v_lshl_add_u32 v{T+11}, v{T+12}, 6, v{T+11}")
    VW = T + 11
    for r in range(16):
        a(f"v_mov_b32 v{ACC+r}, 0")
    stamp(a)
    a("s_waitcnt lgkmcnt(0)")
    a("s_barrier")
    stamp(a)
    def rd(h):
        base = WF + (h & 1) * 4
        a(f"ds_read_b64_tr_b16 {vr(base,2)}, v{VW} offset:{16*h*128}")
        a(f"ds_read_b64_tr_b16 {vr(base+2,2)}, v{VW} offset:{(16*h+8)*128}")
    rd(0)
    acc = vr(ACC, 16)
    for h in range(32):
        if h + 1 < 32:
            rd(h + 1)
            a(f"s_waitcnt vmcnt({31-h}) lgkmcnt(2)")
        else:
            a("s_waitcnt vmcnt(0) lgkmcnt(0)")
        a(f"v_mfma_f32_32x32x16_bf16 {acc}, {vr(WF+(h&1)*4,4)}, {vr(XA+4*h,4)}, {acc}")
    a.nop(16)
    stamp(a)
    a("s_lshl_b32 s30, s11, 7")
    a("s_lshl_b32 s31, s28, 6")
    a("s_add_u32 s30, s30, s31")
    a("s_add_u32 s30, s30, 1024")
    a(f"v_lshlrev_b32 v{T+13}, 11, v{T+7}")
    a(f"v_lshl_add_u32 v{T+13}, v{T+6}, 3, v{T+13}")
    for i in range(4):
        a(f"v_cvt_pk_bf16_f32 v{XA+2*i}, v{ACC+4*i}, v{ACC+4*i+1}")
        a(f"v_cvt_pk_bf16_f32 v{XA+2*i+1}, v{ACC+4*i+2}, v{ACC+4*i+3}")
        a(f"buffer_store_dwordx2 {vr(XA+2*i,2)}, v{T+13}, s[16:19], s30 offen offset:{16*i}")
    a("s_waitcnt vmcnt(0)") if STAMP["on"] else None
    stamp(a)
    a.label(end)
```

```python
from asmlib import *
from k_gemm import WS_Q, WS_K, WS_V, WS_O, WS_KN, WS_TOTAL, QSCALE, MB
from k_attn import wave_max

QKV_LDS = 163840
QKV_VGPR = 128
XB = 98304

def gen_qkv5(a, wg_base=0):
    end = a.newlabel("qkv_end")
    if wg_base:
        a(f"s_sub_u32 s2, s2, {wg_base}")
    a("s_cmp_ge_u32 s2, 256")
    a(f"s_cbranch_scc1 {end}")
    stamp_init(a)
    a("s_load_dwordx2 s[4:5], s[0:1], 56")
    a("s_load_dwordx2 s[6:7], s[0:1], 64")
    a("s_load_dwordx2 s[8:9], s[0:1], 96")
    a("s_and_b32 s13, s2, 3")
    a("s_lshl_b32 s13, s13, 2")
    a("s_bfe_u32 s10, s2, 0x20003")
    a("s_add_u32 s10, s10, s13")
    a("s_bfe_u32 s13, s2, 0x10002")
    a("s_lshl_b32 s13, s13, 3")
    a("s_lshr_b32 s11, s2, 5")
    a("s_add_u32 s11, s11, s13")
    ACC = 0; WF = 48; XF = 72; XAD = 80; XVO = 88
    TID, LANE, H2, TOK, VW, VW2, t0, t1, t2 = range(92, 101)
    EP = 104
    a(f"v_mov_b32 v{TID}, v0")
    a(f"v_and_b32 v{LANE}, 63, v{TID}")
    a(f"v_lshrrev_b32 v{t0}, 6, v{TID}")
    a("s_nop 0")
    a(f"v_readfirstlane_b32 s12, v{t0}")
    a("s_waitcnt lgkmcnt(0)")
    srd(a, 16, 4, 2 * MB)
    srd(a, 20, 6, 512 * 1536 * 2)
    srd(a, 24, 8, WS_TOTAL)
    a("s_mul_i32 s14, s11, 192")
    a("s_lshl_b32 s13, s10, 7")
    a("s_lshl_b32 s15, s12, 5")
    a("s_add_u32 s13, s13, s15")
    a("s_lshl_b32 s15, s12, 10")
    a("s_lshl_b32 s38, s12, 13")
    a(f"s_add_u32 s38, s38, {XB}")
    a(f"v_lshrrev_b32 v{t0}, 4, v{LANE}")
    a(f"v_and_b32 v{t1}, 15, v{LANE}")
    for i in range(4):
        a(f"v_add_u32 v{t2}, {4*i}, v{t0}")
        a(f"v_xor_b32 v{XVO+i}, v{t1}, v{t2}")
        a(f"v_lshlrev_b32 v{XVO+i}, 4, v{XVO+i}")
        a(f"v_add_u32 v{t2}, s13, v{t2}")
        a(f"v_lshl_add_u32 v{XVO+i}, v{t2}, 10, v{XVO+i}")
    def wload(i):
        a(f"v_add_u32 v{t0}, {256*i}, v{TID}")
        a(f"v_mul_u32_u24 v{t1}, 43691, v{t0}")
        a(f"v_lshrrev_b32 v{t1}, 19, v{t1}")
        a(f"v_mul_u32_u24 v{t1}, 2880, v{t1}")
        a(f"s_add_u32 m0, s15, {4096*i}")
        a(f"v_lshl_add_u32 v{t1}, v{t0}, 4, v{t1}")
        a(f"buffer_load_dwordx4 v{t1}, s[20:23], s14 offen lds")
    def xload(c):
        for i in range(8):
            a(f"s_add_u32 m0, s38, {(c&1)*32768 + i*1024}")
            a(f"s_mov_b32 s39, {(i>>2)*16384 + c*256}")
            a(f"buffer_load_dwordx4 v{XVO+(i&3)}, s[16:19], s39 offen lds")
    def issueW(c):
        for i in range(6 * c, 6 * c + 6):
            wload(i)
    issueW(0); xload(0); issueW(1); xload(1); issueW(2); issueW(3)
    a(f"v_and_b32 v{t0}, 31, v{LANE}")
    a(f"v_lshrrev_b32 v{H2}, 5, v{LANE}")
    a(f"v_add_u32 v{TOK}, s13, v{t0}")
    a(f"v_and_b32 v{t1}, 15, v{t0}")
    a(f"v_lshlrev_b32 v{t2}, 1, v{H2}")
    a(f"v_xor_b32 v{t1}, v{t1}, v{t2}")
    a(f"v_lshlrev_b32 v{t0}, 8, v{t0}")
    a(f"v_add_u32 v{t0}, s38, v{t0}")
    for kcl in range(4):
        for st in range(2):
            a(f"v_xor_b32 v{t2}, {4*kcl|st}, v{t1}")
            a(f"v_lshl_add_u32 v{XAD+2*kcl+st}, v{t2}, 4, v{t0}")
    a(f"v_bfe_u32 v{t0}, v{LANE}, 2, 2")
    a(f"v_lshl_add_u32 v{VW}, v{H2}, 4, v{t0}")
    a(f"v_mul_u32_u24 v{VW}, 192, v{VW}")
    a(f"v_bfe_u32 v{t0}, v{LANE}, 4, 1")
    a(f"v_lshl_add_u32 v{VW}, v{t0}, 5, v{VW}")
    a(f"v_and_b32 v{t0}, 3, v{LANE}")
    a(f"v_lshl_add_u32 v{VW}, v{t0}, 3, v{VW}")
    a(f"v_add_u32 v{VW2}, 49152, v{VW}")
    for r in range(48):
        a(f"v_mov_b32 v{ACC+r}, 0")
    steps = [(kc, st) for kc in range(16) for st in range(2)]
    def rd(idx):
        kc, st = steps[idx]
        buf = idx & 1
        off = (32 * kc + 8 * st) * 192
        reg = VW
        if off >= 49152:
            off -= 49152; reg = VW2
        a(f"ds_read_b128 {vr(XF+4*buf,4)}, v{XAD+2*(kc&3)+st} offset:{((kc>>2)&1)*32768}")
        for ct in range(3):
            base = WF + buf * 12 + ct * 4
            a(f"ds_read_b64_tr_b16 {vr(base,2)}, v{reg} offset:{off+ct*64}")
            a(f"ds_read_b64_tr_b16 {vr(base+2,2)}, v{reg} offset:{off+ct*64+768}")
    waits = [26, 20, 8, 0]
    for c in range(4):
        a(f"s_waitcnt vmcnt({waits[c]})")
        if c == 0: stamp(a)
        a("s_barrier")
        if c == 0: stamp(a)
        rd(8 * c)
        for idx in range(8 * c, 8 * c + 8):
            if idx + 1 < 8 * c + 8:
                rd(idx + 1)
                a("s_waitcnt lgkmcnt(7)")
            else:
                a("s_waitcnt lgkmcnt(0)")
                if c + 2 < 4:
                    xload(c + 2)
            buf = idx & 1
            for ct in range(3):
                wf = WF + buf * 12 + ct * 4
                acc = vr(ACC + 16 * ct, 16)
                a(f"v_mfma_f32_32x32x16_bf16 {acc}, {vr(wf,4)}, {vr(XF+4*buf,4)}, {acc}")
    a.nop(16)
    stamp(a)
    a(f"v_lshlrev_b32 v{t0}, 15, v{H2}")
    a(f"v_lshl_add_u32 v{t0}, v{TOK}, 4, v{t0}")
    a(f"v_mov_b32 v{t1}, 0")
    a("s_mul_i32 s28, s11, 3")
    a("s_lshr_b32 s35, s13, 3")
    for ct in range(3):
        src0 = ACC + 16 * ct
        a(f"s_add_u32 s29, s28, {ct}")
        a("s_lshr_b32 s30, s29, 4")
        a("s_and_b32 s31, s29, 15")
        a(f"s_mov_b32 s32, {hexf(QSCALE)}")
        a("s_cmp_eq_u32 s30, 0")
        a("s_cselect_b32 s32, s32, 1.0")
        for r in range(16):
            a(f"v_mul_f32 v{src0+r}, s32, v{src0+r}")
        lblNK = a.newlabel("qkv_nok")
        a("s_cmp_lg_u32 s30, 1")
        a(f"s_cbranch_scc1 {lblNK}")
        a("s_lshl_b32 s33, s31, 9")
        a("s_add_u32 s33, s33, s35")
        a(f"s_add_u32 s33, s33, {WS_KN}")
        for hl in range(2):
            src = src0 + 8 * hl
            q = WF + 2 * hl
            a(f"v_mul_f32 v{q}, v{src}, v{src}")
            for i in range(1, 8):
                a(f"v_fmac_f32 v{q}, v{src+i}, v{src+i}")
            a(f"v_mov_b32 v{q+1}, v{q}")
            a("s_nop 1")
            a(f"v_permlane32_swap_b32 v{q}, v{q+1}")
            a("s_nop 1")
            a(f"v_add_f32 v{q}, v{q}, v{q+1}")
            wave_max(a, q)
        a("s_mov_b32 s36, 0")
        a("s_mov_b32 s37, 0x80000000")
        a("s_mov_b64 exec, s[36:37]")
        for hl in range(2):
            a(f"buffer_store_dword v{WF+2*hl}, v{t1}, s[24:27], s33 offen offset:{hl*256}")
        a("s_mov_b64 exec, -1")
        a.label(lblNK)
        a("s_lshl_b32 s33, s30, 21")
        a("s_lshl_b32 s34, s31, 17")
        a("s_add_u32 s33, s33, s34")
        for hl in range(2):
            src = src0 + 8 * hl
            dst = EP + (ct * 2 + hl) * 4
            for i in range(4):
                a(f"v_cvt_pk_bf16_f32 v{dst+i}, v{src+2*i}, v{src+2*i+1}")
            a(f"buffer_store_dwordx4 {vr(dst,4)}, v{t0}, s[24:27], s33 offen")
            a("s_add_u32 s33, s33, 65536")
    a("s_waitcnt vmcnt(0)") if STAMP["on"] else None
    stamp(a)
    a.label(end)
```

```python
from asmlib import *
import math
import numpy as np
from k_attn import wave_max

L2E = float(np.float32(math.log2(math.e)))
L2E_LO = float(np.float32(math.log2(math.e) - L2E))
LN2 = float(np.float32(math.log(2.0)))
I2P = float(np.float32(1.0 / (2 * math.pi)))
I2P_LO = float(np.float32(1.0 / (2 * math.pi) - I2P))

KD = 0
KM = 6144
UC = KM + 15360
RED = UC + 35328
UMX = 73216
OST = KM
SCR = 6144
S4D_LDS = 73728
S4D_VGPR = 128
ROWS = 528
UCS = 4416
CHS = 57 * ROWS

class RA:
    def __init__(self, start):
        self.n = start
        self.hi = start
    def __call__(self, k=1, align=1):
        while self.n % align: self.n += 1
        r = self.n
        self.n += k
        self.hi = max(self.hi, self.n)
        return r
    def mark(self): return self.n
    def reset(self, m): self.n = m

def gen_s4d(a, wg_base=0):
    end = a.newlabel("s4_end")
    if wg_base:
        a(f"s_sub_u32 s2, s2, {wg_base}")
    a("s_cmp_ge_u32 s2, 256")
    a(f"s_cbranch_scc1 {end}")
    stamp_init(a)
    a("s_load_dwordx4 s[4:7], s[0:1], 0")
    a("s_load_dwordx4 s[8:11], s[0:1], 16")
    a("s_load_dwordx4 s[12:15], s[0:1], 32")
    a("s_load_dwordx2 s[16:17], s[0:1], 48")
    a("s_load_dwordx2 s[18:19], s[0:1], 80")
    a("s_and_b32 s20, s2, 7")
    a("s_lshl_b32 s20, s20, 5")
    a("s_lshr_b32 s21, s2, 3")
    a("s_add_u32 s20, s20, s21")
    a("s_lshl_b32 s20, s20, 1")
    R = RA(0)
    TID = R(); LANE = R(); CH = R(); NM = R()
    t0 = R(); t1 = R(); t2 = R(); t3 = R()
    a(f"v_mov_b32 v{TID}, v0")
    a(f"v_and_b32 v{LANE}, 63, v{TID}")
    a(f"v_lshrrev_b32 v{t0}, 6, v{TID}")
    a(f"v_lshrrev_b32 v{CH}, 7, v{TID}")
    a(f"v_and_b32 v{NM}, 127, v{TID}")
    a("s_nop 0")
    a(f"v_readfirstlane_b32 s22, v{t0}")
    a("s_waitcnt lgkmcnt(0)")
    a("s_lshr_b32 s23, s22, 1")
    a("s_and_b32 s24, s22, 1")
    srd(a, 28, 4, 2048 * 512 * 2)
    srd(a, 32, 6, 512 * 128 * 2)
    srd(a, 36, 8, 512 * 128 * 2)
    srd(a, 40, 10, 512 * 128 * 2)
    srd(a, 44, 12, 512 * 128 * 2)
    srd(a, 48, 14, 1024)
    srd(a, 52, 16, 1024)
    srd(a, 56, 18, 2048 * 1024 * 2)
    a("s_add_u32 s25, s20, s23")
    a("s_lshl_b32 s26, s25, 8")
    DSK = R(); KSC = R(); UR = R(8)
    mk = R.mark()
    LA = R(); AI = R(); CR = R(); CI = R(); LDT = R(); CR2 = R(); CI2 = R()
    a(f"v_lshlrev_b32 v{t0}, 1, v{NM}")
    a(f"v_xor_b32 v{t2}, 128, v{t0}")
    a(f"buffer_load_ushort v{LA}, v{t0}, s[32:35], s26 offen")
    a(f"buffer_load_ushort v{AI}, v{t0}, s[36:39], s26 offen")
    a(f"buffer_load_ushort v{CR}, v{t0}, s[40:43], s26 offen")
    a(f"buffer_load_ushort v{CI}, v{t0}, s[44:47], s26 offen")
    a(f"buffer_load_ushort v{CR2}, v{t2}, s[40:43], s26 offen")
    a(f"buffer_load_ushort v{CI2}, v{t2}, s[44:47], s26 offen")
    a("s_lshl_b32 s26, s25, 1")
    a(f"v_mov_b32 v{t1}, 0")
    a(f"buffer_load_ushort v{LDT}, v{t1}, s[48:51], s26 offen")
    a(f"buffer_load_ushort v{DSK}, v{t1}, s[52:55], s26 offen")
    a(f"v_lshlrev_b32 v{t2}, 10, v{TID}")
    a("s_lshl_b32 s26, s20, 1")
    for k in range(8):
        a(f"buffer_load_dword v{UR+k}, v{t2}, s[28:31], s26 offen")
        if k < 7:
            a("s_add_u32 s26, s26, 262144")
    a(f"s_mov_b32 s60, {hexf(L2E)}")
    a(f"s_mov_b32 s61, {hexf(L2E_LO)}")
    a(f"s_mov_b32 s62, {hexf(LN2)}")
    a(f"s_mov_b32 s63, {hexf(I2P)}")
    a(f"s_mov_b32 s64, {hexf(I2P_LO)}")
    a("s_mov_b32 s65, 0xffff0000")
    a("s_waitcnt vmcnt(8)")
    for r in (LA, AI, CR, CI, LDT, DSK, CR2, CI2):
        a(f"v_lshlrev_b32 v{r}, 16, v{r}")
    def exp_bf16(x):
        a(f"v_mul_f32 v{t0}, s60, v{x}")
        a(f"v_fma_f32 v{t1}, v{x}, s60, -v{t0}")
        a(f"v_fmac_f32 v{t1}, s61, v{x}")
        a(f"v_exp_f32 v{t0}, v{t0}")
        a(f"v_mul_f32 v{t1}, s62, v{t1}")
        a(f"v_fma_f32 v{t0}, v{t0}, v{t1}, v{t0}")
        a(f"v_cvt_pk_bf16_f32 v{t0}, v{t0}, v{t0}")
        a(f"v_lshlrev_b32 v{x}, 16, v{t0}")
    exp_bf16(LDT)
    exp_bf16(LA)
    ER = R(); FIH = R(); FIL = R()
    a(f"v_mul_f32 v{ER}, v{LA}, v{LDT}")
    a(f"v_mul_f32 v{ER}, -1.0, v{ER}")
    a(f"v_mul_f32 v{ER}, s60, v{ER}")
    a(f"v_mul_f32 v{AI}, v{AI}, v{LDT}")
    a(f"v_mul_f32 v{FIH}, s63, v{AI}")
    a(f"v_fma_f32 v{FIL}, v{AI}, s63, -v{FIH}")
    a(f"v_fmac_f32 v{FIL}, s64, v{AI}")
    a(f"v_max3_f32 v{t0}, abs(v{CR}), abs(v{CI}), abs(v{CR2})")
    a(f"v_max_f32 v{t0}, v{t0}, abs(v{CI2})")
    wave_max(a, t0)
    a(f"v_readlane_b32 s66, v{t0}, 63")
    a("s_nop 3")
    a(f"v_mov_b32 v{t0}, s66")
    a(f"v_frexp_exp_i32_f32 v{t1}, v{t0}")
    a(f"v_sub_u32 v{t2}, 0, v{t1}")
    a(f"v_ldexp_f32 v{CR}, v{CR}, v{t2}")
    a(f"v_ldexp_f32 v{CI}, v{CI}, v{t2}")
    a(f"v_sub_f32 v{CI}, 0, v{CI}")
    a(f"v_add_u32 v{t1}, 8, v{t1}")
    a(f"v_ldexp_f32 v{KSC}, v{LDT}, v{t1}")
    def pw(t, re, im, conj=False):
        a(f"s_mov_b32 s66, {hexf(float(t))}")
        a(f"v_mul_f32 v{t0}, s66, v{ER}")
        a(f"v_exp_f32 v{t0}, v{t0}")
        a(f"v_mul_f32 v{t1}, s66, v{FIH}")
        a(f"v_fract_f32 v{t1}, v{t1}")
        a(f"v_fmac_f32 v{t1}, s66, v{FIL}")
        a(f"v_cos_f32 v{t2}, v{t1}")
        a(f"v_sin_f32 v{t3}, v{t1}")
        a("s_nop 0")
        a(f"v_mul_f32 v{re}, v{t0}, v{t2}")
        if conj:
            a(f"v_mul_f32 v{im}, -v{t0}, v{t3}")
        else:
            a(f"v_mul_f32 v{im}, v{t0}, v{t3}")
    def cmul(dr, di, xr, xi, cr, ci):
        a(f"v_mul_f32 v{t0}, v{xi}, v{ci}")
        a(f"v_mul_f32 v{t1}, v{xi}, v{cr}")
        a(f"v_fma_f32 v{dr}, v{xr}, v{cr}, -v{t0}")
        a(f"v_fma_f32 v{di}, v{xr}, v{ci}, v{t1}")
    WR = R(); WI = R(); X = [R(), R(), R(), R()]; H = R()
    SW = R(); SRD_ = R(); KDW = R()
    a(f"v_mul_u32_u24 v{SW}, {CHS}, v{CH}")
    a(f"v_lshl_add_u32 v{SW}, v{NM}, 2, v{SW}")
    a(f"v_add_u32 v{SW}, {SCR}, v{SW}")
    a(f"v_and_b32 v{t0}, 15, v{LANE}")
    a(f"v_mul_u32_u24 v{SRD_}, {ROWS}, v{t0}")
    a(f"v_lshrrev_b32 v{t1}, 4, v{LANE}")
    a(f"v_lshl_add_u32 v{SRD_}, v{t1}, 4, v{SRD_}")
    a(f"s_mul_i32 s26, s23, {CHS}")
    a(f"s_mul_i32 s27, s24, {16*ROWS}")
    a("s_add_u32 s26, s26, s27")
    a(f"s_add_u32 s26, s26, {SCR}")
    a(f"v_add_u32 v{SRD_}, s26, v{SRD_}")
    a(f"v_lshlrev_b32 v{KDW}, 8, v{t1}")
    a(f"v_lshl_add_u32 v{KDW}, v{t0}, 2, v{KDW}")
    a("s_mul_i32 s26, s23, 3072")
    a(f"v_add_u32 v{KDW}, s26, v{KDW}")
    FR = R(16, 4); DACC = R(4, 4)
    stamp(a)
    def chain(row0, n, start_one):
        cur = 0
        for r in range(n):
            xr, xi = X[2*cur], X[2*cur+1]
            a(f"v_cvt_pk_f16_f32 v{H}, v{xr}, v{xi}")
            a(f"ds_write_b32 v{SW}, v{H} offset:{(row0+r)*ROWS}")
            if r < n - 1:
                cmul(X[2*(1-cur)], X[2*(1-cur)+1], xr, xi, WR, WI)
                cur = 1 - cur
    for rnd in range(2):
        for sl in range(2):
            s = 2 * rnd + sl
            pw(2 ** s, WR, WI)
            a(f"v_mov_b32 v{X[0]}, 1.0")
            a(f"v_mov_b32 v{X[1]}, 0")
            chain(16 * sl, 16, True)
            if s > 0:
                pw(128 * 2 ** s, WR, WI, conj=True)
                cmul(X[0], X[1], CR, CI, WR, WI)
            else:
                a(f"v_mov_b32 v{X[0]}, v{CR}")
                a(f"v_mov_b32 v{X[1]}, v{CI}")
            pw(16 * 2 ** s, WR, WI, conj=True)
            chain(32 + 16 * sl, [16, 8, 8, 9][s], False)
        a("s_waitcnt lgkmcnt(0)")
        a("s_barrier")
        for r in range(4):
            a(f"v_mov_b32 v{DACC+r}, 0")
        d = vr(DACC, 4)
        for kk in range(2):
            for ks in range(4):
                k8 = 4 * kk + ks
                a(f"ds_read_b128 {vr(FR+4*(ks&1),4)}, v{SRD_} offset:{32*ROWS + k8*64}")
                a(f"ds_read_b128 {vr(FR+8+4*(ks&1),4)}, v{SRD_} offset:{k8*64}")
                if ks & 1:
                    a("s_waitcnt lgkmcnt(0)")
                    a(f"v_mfma_f32_16x16x32_f16 {d}, {vr(FR,4)}, {vr(FR+8,4)}, {d}")
                    a(f"v_mfma_f32_16x16x32_f16 {d}, {vr(FR+4,4)}, {vr(FR+12,4)}, {d}")
        a.nop(10)
        a(f"s_lshl_b32 s26, s24, 9")
        a(f"s_add_u32 s26, s26, {(256*rnd+128)*4}")
        if rnd == 0:
            a("s_cmp_eq_u32 s24, 0")
            a("s_cselect_b32 s26, 0, s26")
        a(f"v_add_u32 v{t0}, s26, v{KDW}")
        if rnd == 0:
            pass
        for r in range(4):
            a(f"ds_write_b32 v{t0}, v{DACC+r} offset:{16*r*4}")
        a("s_waitcnt lgkmcnt(0)")
        a("s_barrier")
        if rnd == 1:
            lbl = a.newlabel("s4_rw")
            a("s_cmp_eq_u32 s24, 0")
            a(f"s_cbranch_scc1 {lbl}")
            for r in range(4):
                a(f"ds_write_b32 v{t0}, v{DACC+r} offset:{16*r*4}")
            a.label(lbl)
    R.reset(mk)
    stamp(a)
    M = [R(), R()]
    a("s_waitcnt vmcnt(0)")
    for c in range(2):
        for k in range(8):
            if c == 0:
                a(f"v_lshlrev_b32 v{t0}, 16, v{UR+k}")
            else:
                a(f"v_and_b32 v{t0}, s65, v{UR+k}")
            if k == 0:
                a(f"v_and_b32 v{M[c]}, 0x7fffffff, v{t0}")
            else:
                a(f"v_max_f32 v{M[c]}, v{M[c]}, abs(v{t0})")
        wave_max(a, M[c])
    a("s_lshl_b32 s26, s22, 3")
    a(f"s_add_u32 s26, s26, {UMX}")
    a(f"v_mov_b32 v{t0}, s26")
    a("s_mov_b32 s68, 0")
    a("s_mov_b32 s69, 0x80000000")
    a("s_mov_b64 exec, s[68:69]")
    a(f"ds_write_b64 v{t0}, {vr(M[0],2)}")
    a("s_mov_b64 exec, -1")
    Z = R(4, 4)
    for r in range(4):
        a(f"v_mov_b32 v{Z+r}, 0")
    a(f"v_lshlrev_b32 v{t0}, 4, v{TID}")
    a(f"v_add_u32 v{t1}, {UC}, v{t0}")
    for k in range(9):
        a(f"ds_write_b128 v{t1}, {vr(Z,4)} offset:{k*4096}")
    a(f"v_cmp_gt_u32 vcc, 155, v{TID}")
    a("s_and_saveexec_b64 s[68:69], vcc")
    for c in range(2):
        a(f"ds_write_b128 v{t0}, {vr(Z,4)} offset:{KM + c*7680}")
    a("s_mov_b64 exec, s[68:69]")
    a("s_waitcnt lgkmcnt(0)")
    a("s_barrier")
    J = R(); IDX = R(16); KDB = R()
    a(f"v_mul_u32_u24 v{KDB}, 3072, v{CH}")
    for e in range(16):
        a(f"v_lshl_add_u32 v{J}, v{NM}, 4, {e}")
        a(f"v_cvt_f32_u32 v{t0}, v{J}")
        a(f"v_cvt_pk_bf16_f32 v{t0}, v{t0}, v{t0}")
        a(f"v_and_b32 v{t0}, 0xffff, v{t0}")
        a(f"v_subrev_u32 v{t0}, 17024, v{t0}")
        a(f"v_cmp_gt_u32 vcc, 128, v{J}")
        a("s_nop 1")
        a(f"v_cndmask_b32 v{t0}, v{t0}, v{J}, vcc")
        a(f"v_lshl_add_u32 v{IDX+e}, v{t0}, 2, v{KDB}")
        a(f"ds_read_b32 v{IDX+e}, v{IDX+e}")
    UM = R(8, 4)
    a(f"v_mov_b32 v{t0}, {UMX}")
    a(f"ds_read_b128 {vr(UM,4)}, v{t0}")
    a(f"ds_read_b128 {vr(UM+4,4)}, v{t0} offset:16")
    KW = R()
    a(f"v_lshrrev_b32 v{t0}, 1, v{NM}")
    a(f"v_mul_u32_u24 v{KW}, 80, v{t0}")
    a(f"v_and_b32 v{t0}, 1, v{NM}")
    a(f"v_lshl_add_u32 v{KW}, v{t0}, 5, v{KW}")
    a(f"v_mul_u32_u24 v{t0}, 7680, v{CH}")
    a(f"v_add_u32 v{KW}, v{KW}, v{t0}")
    a(f"v_add_u32 v{KW}, {KM + 31*80}, v{KW}")
    HP = R(8, 4)
    a(f"s_mov_b32 s66, {hexf(2.0**-7)}")
    a("s_waitcnt lgkmcnt(0)")
    for p in range(8):
        a(f"v_mul_f32 v{IDX+2*p}, s66, v{IDX+2*p}")
        a(f"v_mul_f32 v{IDX+2*p+1}, s66, v{IDX+2*p+1}")
        a(f"v_cvt_pk_f16_f32 v{HP+p}, v{IDX+2*p}, v{IDX+2*p+1}")
    a(f"ds_write_b128 v{KW}, {vr(HP,4)}")
    a(f"ds_write_b128 v{KW}, {vr(HP+4,4)} offset:16")
    EU = [R(), R()]
    for c in range(2):
        a(f"v_max3_f32 v{t0}, v{UM+c}, v{UM+2+c}, v{UM+4+c}")
        a(f"v_max_f32 v{t0}, v{t0}, v{UM+6+c}")
        a(f"v_frexp_exp_i32_f32 v{t0}, v{t0}")
        a(f"v_sub_u32 v{EU[c]}, 15, v{t0}")
    a(f"v_cmp_eq_u32 vcc, 0, v{CH}")
    a("s_nop 1")
    a(f"v_cndmask_b32 v{t0}, v{EU[1]}, v{EU[0]}, vcc")
    a(f"v_sub_u32 v{t0}, 0, v{t0}")
    a(f"v_ldexp_f32 v{KSC}, v{KSC}, v{t0}")
    NEU = R()
    a(f"v_mov_b32 v{NEU}, v{t0}")
    stamp(a)
    UW = R()
    a(f"v_lshlrev_b32 v{t0}, 1, v{TID}")
    a(f"v_sub_u32 v{UW}, {UC + 2*2047}, v{t0}")
    for k in range(8):
        a(f"v_lshlrev_b32 v{t2}, 16, v{UR+k}")
        a(f"v_and_b32 v{t3}, s65, v{UR+k}")
        a(f"v_ldexp_f32 v{t2}, v{t2}, v{EU[0]}")
        a(f"v_ldexp_f32 v{t3}, v{t3}, v{EU[1]}")
        a(f"v_cvt_pk_f16_f32 v{t2}, v{t2}, v{t3}")
        for phi in range(4):
            off = phi * UCS - 2 * phi - 512 * k
            need_mask = (k == 7 and phi > 0)
            a(f"v_add_u32 v{t1}, {off & 0xffffffff if off < 0 else off}, v{UW}")
            if need_mask:
                a(f"v_cmp_gt_u32 vcc, {256-phi}, v{TID}")
                a("s_and_saveexec_b64 s[68:69], vcc")
            a(f"ds_write_b16 v{t1}, v{t2}")
            a(f"ds_write_b16_d16_hi v{t1}, v{t2} offset:17664")
            if need_mask:
                a("s_mov_b64 exec, s[68:69]")
    keepNEU = UR
    a(f"v_mov_b32 v{keepNEU}, v{NEU}")
    NEU = keepNEU
    R.reset(mk)
    a("s_waitcnt lgkmcnt(0)")
    a("s_barrier")
    stamp(a)
    A31 = R(); H2 = R(); VB = R(); VA = R()
    a(f"v_and_b32 v{A31}, 31, v{LANE}")
    a(f"v_lshrrev_b32 v{H2}, 5, v{LANE}")
    a(f"v_mul_u32_u24 v{VB}, 80, v{A31}")
    a(f"v_lshl_add_u32 v{VB}, v{H2}, 4, v{VB}")
    a("s_mul_i32 s26, s23, 7680")
    a(f"s_add_u32 s26, s26, {KM + 31*80}")
    a(f"v_add_u32 v{VB}, s26, v{VB}")
    a(f"v_and_b32 v{t0}, 3, v{A31}")
    a(f"v_sub_u32 v{t0}, 3, v{t0}")
    a(f"v_mul_u32_u24 v{VA}, {UCS}, v{t0}")
    a(f"v_lshrrev_b32 v{t0}, 2, v{A31}")
    a(f"v_lshlrev_b32 v{t0}, 3, v{t0}")
    a(f"v_sub_u32 v{VA}, v{VA}, v{t0}")
    a(f"v_lshl_add_u32 v{VA}, v{H2}, 4, v{VA}")
    a("s_mul_i32 s26, s23, 17664")
    a(f"s_add_u32 s26, s26, {UC + 2*2044}")
    a(f"v_add_u32 v{VA}, s26, v{VA}")
    ACC0 = R(16, 4); ACC1 = R(16, 4)
    for r in range(16):
        a(f"v_mov_b32 v{ACC0+r}, 0")
        a(f"v_mov_b32 v{ACC1+r}, 0")
    BF = [R(8, 4), R(8, 4)]
    AF = [R(16, 4), R(16, 4)]
    VBc = R(); VAc = R()
    c1 = vr(ACC1, 16); c0 = vr(ACC0, 16)
    def conv_range(d_hi, d_lo, two):
        n = d_hi - d_lo + 1
        assert n % 2 == 0
        nl = 2 + (8 if two else 4)
        a(f"v_add_u32 v{VBc}, {((d_hi-1)*80) & 0xffffffff}, v{VB}")
        a(f"v_add_u32 v{VAc}, {(-64*(32-d_hi+1)) & 0xffffffff}, v{VA}")
        def rd(buf, first):
            bo = 80 if first else 0
            ao = 64 if first else 0
            a(f"ds_read_b128 {vr(BF[buf],4)}, v{VBc} offset:{bo}")
            a(f"ds_read_b128 {vr(BF[buf]+4,4)}, v{VBc} offset:{bo+32}")
            for h in range(2):
                a(f"ds_read_b64 {vr(AF[buf]+4*h,2)}, v{VAc} offset:{ao+32*h}")
                a(f"ds_read_b64 {vr(AF[buf]+4*h+2,2)}, v{VAc} offset:{ao+32*h+8}")
            if two:
                for h in range(2):
                    a(f"ds_read_b64 {vr(AF[buf]+8+4*h,2)}, v{VAc} offset:{2048+ao+32*h}")
                    a(f"ds_read_b64 {vr(AF[buf]+8+4*h+2,2)}, v{VAc} offset:{2048+ao+32*h+8}")
        def mm(buf):
            for h in range(2):
                a(f"v_mfma_f32_32x32x16_f16 {c1}, {vr(AF[buf]+4*h,4)}, {vr(BF[buf]+4*h,4)}, {c1}")
                if two:
                    a(f"v_mfma_f32_32x32x16_f16 {c0}, {vr(AF[buf]+8+4*h,4)}, {vr(BF[buf]+4*h,4)}, {c0}")
        rd(0, True)
        a(f"s_mov_b32 s67, {n//2}")
        lp = a.newlabel("s4_conv")
        a.label(lp)
        rd(1, False)
        a(f"v_subrev_u32 v{VBc}, 160, v{VBc}")
        a(f"v_subrev_u32 v{VAc}, 128, v{VAc}")
        a(f"s_waitcnt lgkmcnt({nl})")
        mm(0)
        rd(0, True)
        a(f"s_waitcnt lgkmcnt({nl})")
        mm(1)
        a("s_sub_u32 s67, s67, 1")
        a("s_cmp_lg_u32 s67, 0")
        a(f"s_cbranch_scc1 {lp}")
        a("s_waitcnt lgkmcnt(0)")
    lblB = a.newlabel("s4_partB"); lblJ = a.newlabel("s4_join")
    a("s_cmp_eq_u32 s24, 1")
    a(f"s_cbranch_scc1 {lblB}")
    conv_range(32, 1, False)
    conv_range(0, -7, True)
    a(f"s_branch {lblJ}")
    a.label(lblB)
    conv_range(-8, -31, True)
    a.label(lblJ)
    a.nop(16)
    stamp(a)
    RW = R()
    a(f"v_lshlrev_b32 v{RW}, 2, v{LANE}")
    a("s_lshl_b32 s26, s22, 12")
    a(f"s_add_u32 s26, s26, {RED}")
    a(f"v_add_u32 v{t2}, s26, v{RW}")
    a("s_xor_b32 s27, s22, 1")
    a("s_lshl_b32 s27, s27, 12")
    a(f"s_add_u32 s27, s27, {RED}")
    a(f"v_add_u32 v{t3}, s27, v{RW}")
    lblB2 = a.newlabel("s4_xB"); lblJ2 = a.newlabel("s4_xJ")
    a("s_cmp_eq_u32 s24, 1")
    a(f"s_cbranch_scc1 {lblB2}")
    for r in range(16):
        a(f"ds_write_b32 v{t2}, v{ACC0+r} offset:{r*256}")
    a(f"s_branch {lblJ2}")
    a.label(lblB2)
    for r in range(16):
        a(f"ds_write_b32 v{t2}, v{ACC1+r} offset:{r*256}")
    for r in range(16):
        a(f"v_mov_b32 v{ACC1+r}, v{ACC0+r}")
    a.label(lblJ2)
    a("s_waitcnt lgkmcnt(0)")
    a("s_barrier")
    for r in range(16):
        a(f"ds_read_b32 v{ACC0+r}, v{t3} offset:{r*256}")
    LB = R()
    a("s_xor_b32 s26, s24, 1")
    a("s_lshl_b32 s26, s26, 10")
    a(f"v_lshlrev_b32 v{LB}, 5, v{A31}")
    a(f"v_lshl_add_u32 v{LB}, v{H2}, 2, v{LB}")
    a(f"v_add_u32 v{LB}, s26, v{LB}")
    a("s_mul_i32 s26, s23, 17664")
    a(f"s_add_u32 s26, s26, {UC + 2*2044 - 48}")
    a(f"v_lshlrev_b32 v{t0}, 1, v{LB}")
    a(f"v_sub_u32 v{t0}, s26, v{t0}")
    UV = AF[0]
    for i in range(4):
        a(f"ds_read_b64 {vr(UV+2*i,2)}, v{t0} offset:{48-16*i}")
    a(f"v_lshlrev_b32 v{t2}, 1, v{LB}")
    a("s_lshl_b32 s26, s23, 12")
    a(f"s_add_u32 s26, s26, {OST}")
    a(f"v_add_u32 v{t2}, s26, v{t2}")
    a("s_waitcnt lgkmcnt(0)")
    UF = AF[1]; OP = BF[0]
    for i in range(4):
        a(f"v_cvt_f32_f16 v{UF+3}, v{UV+2*i}")
        a(f"v_lshrrev_b32 v{t0}, 16, v{UV+2*i}")
        a(f"v_cvt_f32_f16 v{UF+2}, v{t0}")
        a(f"v_cvt_f32_f16 v{UF+1}, v{UV+2*i+1}")
        a(f"v_lshrrev_b32 v{t0}, 16, v{UV+2*i+1}")
        a(f"v_cvt_f32_f16 v{UF+0}, v{t0}")
        for jj in range(4):
            r = 4 * i + jj
            a(f"v_add_f32 v{ACC1+r}, v{ACC1+r}, v{ACC0+r}")
            a(f"v_mul_f32 v{ACC1+r}, v{ACC1+r}, v{KSC}")
            a(f"v_ldexp_f32 v{UF+jj}, v{UF+jj}, v{NEU}")
            a(f"v_mul_f32 v{UF+jj}, v{UF+jj}, v{DSK}")
            a(f"v_cvt_pk_bf16_f32 v{t0}, v{ACC1+r}, v{UF+jj}")
            a(f"v_lshlrev_b32 v{t1}, 16, v{t0}")
            a(f"v_and_b32 v{t0}, s65, v{t0}")
            a(f"v_add_f32 v{UF+4+jj}, v{t0}, v{t1}")
        a(f"v_cvt_pk_bf16_f32 v{OP+2*i}, v{UF+4}, v{UF+5}")
        a(f"v_cvt_pk_bf16_f32 v{OP+2*i+1}, v{UF+6}, v{UF+7}")
        a(f"ds_write_b64 v{t2}, {vr(OP+2*i,2)} offset:{16*i}")
    a("s_waitcnt lgkmcnt(0)")
    a("s_barrier")
    a(f"v_lshlrev_b32 v{t0}, 1, v{TID}")
    a(f"v_add_u32 v{t0}, {OST}, v{t0}")
    O0 = ACC0; O1 = ACC0 + 8
    for k in range(8):
        a(f"ds_read_u16 v{O0+k}, v{t0} offset:{k*512}")
        a(f"ds_read_u16 v{O1+k}, v{t0} offset:{4096+k*512}")
    a(f"v_lshlrev_b32 v{t1}, 11, v{TID}")
    a("s_lshl_b32 s26, s20, 1")
    a("s_waitcnt lgkmcnt(0)")
    for k in range(8):
        a(f"v_lshl_or_b32 v{O0+k}, v{O1+k}, 16, v{O0+k}")
        a(f"buffer_store_dword v{O0+k}, v{t1}, s[56:59], s26 offen")
        if k < 7:
            a("s_add_u32 s26, s26, 524288")
    a("s_waitcnt vmcnt(0)") if STAMP["on"] else None
    stamp(a)
    a.label(end)
    assert R.hi <= S4D_VGPR, R.hi
```

```python
import sys
from asmlib import *
from k_gemm import *
from k_attn import wave_max
from k_attn4 import *
from k_qkv5 import *
try:
    from k_s4d import *
    HAVE_S4D = True
except ImportError:
    HAVE_S4D = False

import os
FORCE_SLOW = bool(os.environ.get("FORCE_SLOW"))
NAME = "concat_heads__ssm_conv_s4d__softmax_full_mha__prompt"
hdr = open(f"cdna_kernels/{NAME}.s.ref").read().split("; Override launch geometry")[0]

def build(diag=False):
    STAMP["on"] = diag
    V = (lambda n: 256 if n > 128 else 128) if diag else (lambda n: n)
    a = Asm()
    launches = []
    descs = []
    a.raw('.amdgcn_target "amdgcn-amd-amdhsa--gfx950"')
    kernel_header(a, "qkv_kernel"); gen_qkv5(a); a("s_endpgm")
    launches.append(f"; @launch kernel=qkv_kernel grid=(256,1,1) block=(256,1,1) lds={QKV_LDS}")
    descs.append(kernel_desc("qkv_kernel", V(QKV_VGPR)))
    kernel_header(a, "attn_kernel"); gen_attn(a, force_slow=FORCE_SLOW); a("s_endpgm")
    launches.append(f"; @launch kernel=attn_kernel grid=(256,1,1) block=({ATTN_BLOCK},1,1) lds={ATTN_LDS}")
    descs.append(kernel_desc("attn_kernel", V(ATTN_VGPR)))
    kernel_header(a, "fin_kernel")
    lbl = a.newlabel("fin_op")
    a("s_cmp_ge_u32 s2, 256")
    a(f"s_cbranch_scc1 {lbl}")
    gen_s4d(a); a("s_endpgm")
    a.label(lbl)
    gen_oproj(a, wg_base=256); a("s_endpgm")
    launches.append(f"; @launch kernel=fin_kernel grid=(512,1,1) block=(256,1,1) lds={S4D_LDS}")
    descs.append(kernel_desc("fin_kernel", 256))
    return hdr + "\n".join(launches) + "\n" + a.text() + "".join(descs)

def build_sep(diag=False):
    STAMP["on"] = diag
    V = (lambda n: 256 if n > 128 else 128) if diag else (lambda n: n)
    a = Asm()
    launches = []
    descs = []
    a.raw('.amdgcn_target "amdgcn-amd-amdhsa--gfx950"')
    kernel_header(a, "qkv_kernel"); gen_qkv5(a); a("s_endpgm")
    launches.append(f"; @launch kernel=qkv_kernel grid=(256,1,1) block=(256,1,1) lds={QKV_LDS}")
    descs.append(kernel_desc("qkv_kernel", V(QKV_VGPR)))
    kernel_header(a, "s4d_kernel"); gen_s4d(a); a("s_endpgm")
    launches.append(f"; @launch kernel=s4d_kernel grid=(256,1,1) block=(256,1,1) lds={S4D_LDS}")
    descs.append(kernel_desc("s4d_kernel", V(S4D_VGPR)))
    kernel_header(a, "attn_kernel"); gen_attn(a, force_slow=FORCE_SLOW); a("s_endpgm")
    launches.append(f"; @launch kernel=attn_kernel grid=(256,1,1) block=({ATTN_BLOCK},1,1) lds={ATTN_LDS}")
    descs.append(kernel_desc("attn_kernel", V(ATTN_VGPR)))
    kernel_header(a, "fin_kernel")
    gen_oproj(a); a("s_endpgm")
    launches.append(f"; @launch kernel=fin_kernel grid=(256,1,1) block=(256,1,1) lds=65536")
    descs.append(kernel_desc("fin_kernel", 256))
    return hdr + "\n".join(launches) + "\n" + a.text() + "".join(descs)

if __name__ == "__main__":
    out = sys.argv[1] if len(sys.argv) > 1 else f"cdna_kernels/{NAME}.s"
    b = build_sep if os.environ.get("SEP") else build
    open(out, "w").write(b(diag=(len(sys.argv) > 2)))
    print("wrote", out)
```

```python
from asmlib import *
from k_gemm import WS_Q, WS_K, WS_V, WS_O, WS_KN, WS_TOTAL
from k_attn import wave_max

ATTN_VGPR = 128
ATTN_BLOCK = 512
BUFSZ = 32896
CB = 2 * BUFSZ + 1024
FLG = CB + 5120
ATTN_LDS = 73728

import os
PSTEP = int(os.environ.get('PSTEP', '1'))
def gen_attn(a, wg_base=0, U=8, force_slow=False):
    end = a.newlabel("at_end")
    if wg_base:
        a(f"s_sub_u32 s2, s2, {wg_base}")
    a("s_cmp_ge_u32 s2, 256")
    a(f"s_cbranch_scc1 {end}")
    stamp_init(a)
    a("s_load_dwordx2 s[8:9], s[0:1], 96")
    a("s_and_b32 s10, s2, 7")
    a("s_lshl_b32 s10, s10, 2")
    a("s_bfe_u32 s11, s2, 0x20003")
    a("s_add_u32 s10, s10, s11")
    a("s_lshr_b32 s11, s2, 5")
    SA = 0; SB = 16; NEGM = 32; OACC = 48
    QF = 64; KF = 68; VF = 76; P = 92
    T = 100
    a(f"v_mov_b32 v{T}, v0")
    a(f"v_and_b32 v{T+1}, 63, v{T}")
    a(f"v_lshrrev_b32 v{T+2}, 6, v{T}")
    a("s_nop 0")
    a(f"v_readfirstlane_b32 s12, v{T+2}")
    a("s_waitcnt lgkmcnt(0)")
    srd(a, 24, 8, WS_TOTAL)
    a("s_lshl_b32 s13, s10, 16")
    a(f"v_and_b32 v{T+5}, 31, v{T+1}")
    a(f"v_lshrrev_b32 v{T+6}, 5, v{T+1}")
    a("s_lshl_b32 s15, s11, 8")
    a("s_lshl_b32 s16, s12, 5")
    a("s_add_u32 s15, s15, s16")
    a(f"v_add_u32 v{T+7}, s15, v{T+5}")
    a(f"v_lshlrev_b32 v{T+8}, 15, v{T+6}")
    a(f"v_lshl_add_u32 v{T+8}, v{T+7}, 4, v{T+8}")
    a(f"s_add_u32 s14, s13, {WS_Q}")
    a(f"buffer_load_dwordx4 {vr(QF,4)}, v{T+8}, s[24:27], s14 offen")
    KN = T + 16
    a(f"v_lshlrev_b32 v{T+4}, 2, v{T+1}")
    a("s_lshl_b32 s14, s10, 8")
    a(f"s_add_u32 s14, s14, {WS_KN}")
    a(f"buffer_load_dword v{KN}, v{T+4}, s[24:27], s14 offen")
    a("s_and_b32 s28, s12, 1")
    a("s_bfe_u32 s29, s12, 0x10001")
    a("s_lshr_b32 s30, s12, 2")
    a("s_lshl_b32 s30, s30, 12")
    a("s_lshl_b32 s31, s28, 15")
    a(f"s_mul_i32 s33, s29, {WS_V - WS_K}")
    a("s_add_u32 s31, s31, s33")
    a("s_add_u32 s31, s31, s30")
    a("s_add_u32 s31, s31, s13")
    a(f"s_add_u32 s31, s31, {WS_K}")
    a("s_and_b32 s33, s12, 3")
    a("s_lshl_b32 s32, s33, 13")
    a("s_add_u32 s32, s32, s30")
    a("s_cmp_eq_u32 s33, 3")
    a("s_cselect_b32 s33, 64, 0")
    a("s_add_u32 s32, s32, s33")
    a(f"v_lshlrev_b32 v{T+3}, 4, v{T+1}")
    def dma(ph_sreg=None, ph=None):
        if ph is not None:
            a(f"s_add_u32 s34, s31, {ph*8192}")
            a(f"s_add_u32 s35, s32, {(ph&1)*BUFSZ}")
        else:
            a(f"s_lshl_b32 s34, {ph_sreg}, 13")
            a("s_add_u32 s34, s34, s31")
            a(f"s_and_b32 s35, {ph_sreg}, 1")
            a(f"s_mul_i32 s35, s35, {BUFSZ}")
            a("s_add_u32 s35, s35, s32")
        for i in range(4):
            a(f"s_add_u32 m0, s35, {1024*i}")
            a(f"s_add_u32 s36, s34, {1024*i}")
            a(f"buffer_load_dwordx4 v{T+3}, s[24:27], s36 offen lds")
    dma(ph=0); dma(ph=1)
    VK = T + 9; VV = T + 10
    a(f"v_lshlrev_b32 v{VK}, 13, v{T+6}")
    a(f"v_lshl_add_u32 v{VK}, v{T+5}, 4, v{VK}")
    a(f"v_and_b32 v{T+11}, 1, v{T+1}")
    a(f"v_mul_u32_u24 v{VV}, {8192+64}, v{T+11}")
    a(f"v_bfe_u32 v{T+11}, v{T+1}, 2, 2")
    a(f"v_lshl_add_u32 v{T+11}, v{T+6}, 2, v{T+11}")
    a(f"v_lshl_add_u32 v{VV}, v{T+11}, 4, v{VV}")
    a(f"v_bfe_u32 v{T+11}, v{T+1}, 1, 1")
    a(f"v_lshl_add_u32 v{VV}, v{T+11}, 3, v{VV}")
    a(f"v_add_u32 v{VV}, 16384, v{VV}")
    a(f"v_and_b32 v{T+11}, 3, v{T+1}")
    a(f"v_cmp_eq_u32 vcc, 0, v{T+11}")
    a(f"v_mov_b32 v{T+11}, {CB+8}")
    a(f"v_mov_b32 v{T+12}, {CB}")
    a("s_nop 0")
    a(f"v_cndmask_b32 v{T+11}, v{T+11}, v{T+12}, vcc")
    a(f"v_bfe_u32 v{T+12}, v{T+1}, 4, 1")
    a(f"v_cmp_eq_u32 vcc, 1, v{T+12}")
    a("s_nop 1")
    a(f"v_cndmask_b32 v{VV}, v{VV}, v{T+11}, vcc")
    VINC = T + 17; VBUF = T + 19
    a(f"v_mov_b32 v{VINC}, {U*512}")
    a(f"v_cndmask_b32 v{VINC}, v{VINC}, 0, vcc")
    a(f"v_mov_b32 v{VBUF}, {BUFSZ}")
    a(f"v_cndmask_b32 v{VBUF}, v{VBUF}, 0, vcc")
    a(f"v_mov_b32 v{VF}, 0x3f80")
    a(f"v_mov_b32 v{VF+1}, 0")
    a(f"v_mov_b32 v{VF+2}, 0")
    a(f"v_mov_b32 v{VF+3}, 0")
    a(f"v_lshlrev_b32 v{T+11}, 4, v{T}")
    a(f"v_add_u32 v{T+11}, {CB}, v{T+11}")
    a(f"v_cmp_gt_u32 vcc, 320, v{T}")
    a("s_and_saveexec_b64 s[20:21], vcc")
    a(f"ds_write_b128 v{T+11}, {vr(VF,4)}")
    a("s_mov_b64 exec, s[20:21]")
    FA = T + 18
    a(f"v_mov_b32 v{FA}, {FLG}")
    a(f"ds_write_b32 v{FA}, v{VF+1}")
    M0 = T + 12; M1 = T + 13
    VKc = T + 14; VVc = T + 15
    S = [SA, SB]
    a("s_waitcnt vmcnt(8)")
    wave_max(a, KN)
    a(f"v_readlane_b32 s22, v{KN}, 63")
    a(f"v_mov_b32 v{M0}, 0")
    a("s_mov_b32 s23, 0xffff0000")
    for i in range(4):
        a(f"v_lshlrev_b32 v{M1}, 16, v{QF+i}")
        a(f"v_fmac_f32 v{M0}, v{M1}, v{M1}")
        a(f"v_and_b32 v{M1}, s23, v{QF+i}")
        a(f"v_fmac_f32 v{M0}, v{M1}, v{M1}")
    a(f"v_mov_b32 v{M1}, v{M0}")
    a("s_nop 1")
    a(f"v_permlane32_swap_b32 v{M0}, v{M1}")
    a("s_nop 1")
    a(f"v_add_f32 v{M0}, v{M0}, v{M1}")
    a(f"v_mul_f32 v{M0}, s22, v{M0}")
    a(f"v_sqrt_f32 v{M0}, v{M0}")
    a("s_nop 0")
    a(f"v_mul_f32 v{M0}, {hexf(-1.02)}, v{M0}")
    for r in range(16):
        a(f"v_mov_b32 v{NEGM+r}, v{M0}")
        a(f"v_mov_b32 v{OACC+r}, 0")
    def vread(dst, tile_off):
        for t16 in range(2):
            for i in range(2):
                a(f"ds_read_b64_tr_b16 {vr(dst+4*t16+2*i,2)}, v{VVc} offset:{tile_off + (16*t16+8*i)*16}")
    def pro(kind):
        a(f"ds_read_b128 {vr(KF,4)}, v{VKc}")
        a(f"ds_read_b128 {vr(KF+4,4)}, v{VKc} offset:512")
        if kind == 2:
            vread(VF, 0)
            a("s_waitcnt lgkmcnt(5)")
            a(f"v_mfma_f32_32x32x16_bf16 {vr(SA,16)}, {vr(KF,4)}, {vr(QF,4)}, {vr(NEGM,16)}")
        else:
            a("s_waitcnt lgkmcnt(1)")
            a(f"v_mfma_f32_32x32x16_bf16 {vr(SA,16)}, {vr(KF,4)}, {vr(QF,4)}, 0")
        a.nop(8)
    def group(kind, pp=None):
        for u in range(U):
            b = u & 1
            if pp is not None and u % PSTEP == 0:
                a(f"s_setprio {((u // PSTEP) + pp) & 1}")
            a(f"ds_read_b128 {vr(KF+4*b,4)}, v{VKc} offset:{(u+2)*512}")
            if kind == 2:
                vread(VF + 8 * (1 - b), (u + 1) * 512)
                a("s_waitcnt lgkmcnt(9)")
                a(f"v_mfma_f32_32x32x16_bf16 {vr(S[1-b],16)}, {vr(KF+4*(1-b),4)}, {vr(QF,4)}, {vr(NEGM,16)}")
                s = S[b]
                for hh in range(2):
                    for i in range(8 * hh, 8 * hh + 8):
                        a(f"v_exp_f32 v{s+i}, v{s+i}")
                    for i in range(4 * hh, 4 * hh + 4):
                        a(f"v_cvt_pk_bf16_f32 v{P+i}, v{s+2*i}, v{s+2*i+1}")
                    if hh == 0:
                        a("s_waitcnt lgkmcnt(5)")
                        a("s_nop 0")
                    else:
                        a("s_nop 1")
                    a(f"v_mfma_f32_32x32x16_bf16 {vr(OACC,16)}, {vr(VF+8*b+4*hh,4)}, {vr(P+4*hh,4)}, {vr(OACC,16)}")
            else:
                a("s_waitcnt lgkmcnt(1)")
                a(f"v_mfma_f32_32x32x16_bf16 {vr(S[1-b],16)}, {vr(KF+4*(1-b),4)}, {vr(QF,4)}, 0")
                a("s_nop 1")
                s = S[b]
                for i in range(4):
                    a(f"v_max3_f32 v{M0}, v{s+4*i}, v{s+4*i+1}, v{M0}")
                    a(f"v_max3_f32 v{M1}, v{s+4*i+2}, v{s+4*i+3}, v{M1}")
        a(f"v_add_u32 v{VKc}, {U*512}, v{VKc}")
        a(f"v_add_u32 v{VVc}, v{VINC}, v{VVc}")
    def stream(kind, first, pp=None):
        a("s_waitcnt vmcnt(4)")
        a("s_mov_b32 s17, 0")
        lp = a.newlabel("at_lp"); lg = a.newlabel("at_g"); lw = a.newlabel("at_w"); ld = a.newlabel("at_d")
        a.label(lp)
        a("s_bitcmp1_b32 s17, 0")
        a(f"s_cbranch_scc1 {lg}")
        a("s_cmp_eq_u32 s17, 0")
        a(f"s_cbranch_scc1 {lw}")
        a("s_waitcnt vmcnt(0)")
        a.label(lw)
        a("s_waitcnt lgkmcnt(0)")
        if first: stamp(a)
        a("s_barrier")
        a("s_lshr_b32 s37, s17, 1")
        a("s_cmp_eq_u32 s37, 0")
        a(f"s_cbranch_scc1 {ld}")
        a("s_cmp_eq_u32 s37, 3")
        a(f"s_cbranch_scc1 {ld}")
        a("s_add_u32 s38, s37, 1")
        dma(ph_sreg="s38")
        a.label(ld)
        a("s_and_b32 s37, s37, 1")
        a(f"s_mul_i32 s38, s37, {BUFSZ}")
        a(f"v_add_u32 v{VKc}, s38, v{VK}")
        a(f"v_mul_lo_u32 v{VVc}, s37, v{VBUF}")
        a(f"v_add_u32 v{VVc}, v{VVc}, v{VV}")
        pro(kind)
        a.label(lg)
        import os
        PR = os.environ.get("APRIO", "alt")
        if PR == "alt":
            lq = a.newlabel("at_pr"); lq2 = a.newlabel("at_pr2")
            a("s_lshr_b32 s39, s12, 2")
            a("s_xor_b32 s39, s39, s17")
            a("s_bitcmp1_b32 s39, 0")
            a(f"s_cbranch_scc1 {lq}")
            a("s_setprio 0")
            a(f"s_branch {lq2}")
            a.label(lq)
            a("s_setprio 1")
            a.label(lq2)
        group(kind, pp)
        a("s_add_u32 s17, s17, 1")
        a("s_cmp_lt_u32 s17, 8")
        a(f"s_cbranch_scc1 {lp}")
        a("s_waitcnt lgkmcnt(0)")
        a.nop(16)
    import os
    if os.environ.get("APRIO", "") == "young":
        lq = a.newlabel("at_pry")
        a("s_cmp_lt_u32 s12, 4")
        a(f"s_cbranch_scc1 {lq}")
        a("s_setprio 1")
        a.label(lq)
    if os.environ.get("APRIO", "").startswith("st"):
        lq = a.newlabel("at_hi"); lq2 = a.newlabel("at_hj")
        a("s_cmp_ge_u32 s12, 4")
        a(f"s_cbranch_scc1 {lq}")
        stream(2, True, 0)
        a(f"s_branch {lq2}")
        a.label(lq)
        stream(2, True, 1)
        a.label(lq2)
        a("s_setprio 0")
    else:
        stream(2, True)
    stamp(a)
    a(f"v_mov_b32 v{M0}, v{OACC+8}")
    a(f"v_mov_b32 v{M1}, v{OACC+8}")
    a("s_nop 1")
    a(f"v_permlane32_swap_b32 v{M0}, v{M1}")
    a("s_nop 1")
    lchk = a.newlabel("at_chk")
    a(f"v_cmp_nle_f32 vcc, {hexf(2.0**-64)}, v{M0}")
    if force_slow:
        a("s_mov_b64 vcc, -1")
    a("s_nop 1")
    a(f"s_cbranch_vccz {lchk}")
    a(f"v_mov_b32 v{M1}, 1")
    a(f"ds_write_b32 v{FA}, v{M1}")
    a("s_waitcnt lgkmcnt(0)")
    a.label(lchk)
    a("s_barrier")
    a(f"ds_read_b32 v{M1}, v{FA}")
    a("s_waitcnt lgkmcnt(0)")
    a(f"v_readfirstlane_b32 s33, v{M1}")
    lfin = a.newlabel("at_fin")
    a("s_nop 3")
    a("s_cmp_eq_u32 s33, 0")
    a(f"s_cbranch_scc1 {lfin}")
    a(f"v_mov_b32 v{M0}, 0xff800000")
    a(f"v_mov_b32 v{M1}, 0xff800000")
    dma(ph=0); dma(ph=1)
    stream(1, False)
    a(f"v_max_f32 v{M0}, v{M0}, v{M1}")
    a(f"v_mov_b32 v{M1}, v{M0}")
    a("s_nop 1")
    a(f"v_permlane32_swap_b32 v{M0}, v{M1}")
    a("s_nop 1")
    a(f"v_max_f32 v{M0}, v{M0}, v{M1}")
    a.nop(4)
    for r in range(16):
        a(f"v_sub_f32 v{NEGM+r}, 0, v{M0}")
        a(f"v_mov_b32 v{OACC+r}, 0")
    a("s_barrier")
    dma(ph=0); dma(ph=1)
    stream(2, False)
    a(f"v_mov_b32 v{M0}, v{OACC+8}")
    a(f"v_mov_b32 v{M1}, v{OACC+8}")
    a("s_nop 1")
    a(f"v_permlane32_swap_b32 v{M0}, v{M1}")
    a("s_nop 1")
    a.label(lfin)
    a(f"v_rcp_f32 v{M0}, v{M0}")
    a("s_nop 1")
    for r in range(8):
        a(f"v_mul_f32 v{OACC+r}, v{OACC+r}, v{M0}")
    for i in range(4):
        a(f"v_cvt_pk_bf16_f32 v{P+i}, v{OACC+2*i}, v{OACC+2*i+1}")
    a(f"s_add_u32 s14, s13, {WS_O}")
    a(f"buffer_store_dwordx4 {vr(P,4)}, v{T+8}, s[24:27], s14 offen nt")
    a("s_waitcnt vmcnt(0)") if STAMP["on"] else None
    stamp(a)
    a.label(end)
```

```python
from asmlib import *
import os
from k_gemm import WS_Q, WS_K, WS_V, WS_O, WS_KN, WS_TOTAL, QSCALE, MB
from k_attn import wave_max

QKV_LDS = 163840
QKV_VGPR = 128
XB = 98304

def gen_qkv5(a, wg_base=0):
    end = a.newlabel("qkv_end")
    if wg_base:
        a(f"s_sub_u32 s2, s2, {wg_base}")
    a("s_cmp_ge_u32 s2, 256")
    a(f"s_cbranch_scc1 {end}")
    stamp_init(a)
    a("s_load_dwordx2 s[4:5], s[0:1], 56")
    a("s_load_dwordx2 s[6:7], s[0:1], 64")
    a("s_load_dwordx2 s[8:9], s[0:1], 96")
    a("s_and_b32 s13, s2, 3")
    a("s_lshl_b32 s13, s13, 2")
    a("s_bfe_u32 s10, s2, 0x20003")
    a("s_add_u32 s10, s10, s13")
    a("s_bfe_u32 s13, s2, 0x10002")
    a("s_lshl_b32 s13, s13, 3")
    a("s_lshr_b32 s11, s2, 5")
    a("s_add_u32 s11, s11, s13")
    ACC = 0; WF = 48; XF = 84; XAD = 96; XVO = 104
    TID, LANE, H2, TOK, VW, VW2, t0, t1, t2 = range(108, 117)
    EP = 52
    a(f"v_mov_b32 v{TID}, v0")
    a(f"v_and_b32 v{LANE}, 63, v{TID}")
    a(f"v_lshrrev_b32 v{t0}, 6, v{TID}")
    a("s_nop 0")
    a(f"v_readfirstlane_b32 s12, v{t0}")
    a("s_waitcnt lgkmcnt(0)")
    srd(a, 16, 4, 2 * MB)
    srd(a, 20, 6, 512 * 1536 * 2)
    srd(a, 24, 8, WS_TOTAL)
    a("s_mul_i32 s14, s11, 192")
    a("s_lshl_b32 s13, s10, 7")
    a("s_lshl_b32 s15, s12, 5")
    a("s_add_u32 s13, s13, s15")
    a("s_lshl_b32 s15, s12, 10")
    a("s_lshl_b32 s38, s12, 13")
    a(f"s_add_u32 s38, s38, {XB}")
    a(f"v_lshrrev_b32 v{t0}, 4, v{LANE}")
    a(f"v_and_b32 v{t1}, 15, v{LANE}")
    for i in range(4):
        a(f"v_add_u32 v{t2}, {4*i}, v{t0}")
        a(f"v_xor_b32 v{XVO+i}, v{t1}, v{t2}")
        a(f"v_lshlrev_b32 v{XVO+i}, 4, v{XVO+i}")
        a(f"v_add_u32 v{t2}, s13, v{t2}")
        a(f"v_lshl_add_u32 v{XVO+i}, v{t2}, 10, v{XVO+i}")
    def wload(i):
        a(f"v_add_u32 v{t0}, {256*i}, v{TID}")
        a(f"v_mul_u32_u24 v{t1}, 43691, v{t0}")
        a(f"v_lshrrev_b32 v{t1}, 19, v{t1}")
        a(f"v_mul_u32_u24 v{t1}, 2880, v{t1}")
        a(f"s_add_u32 m0, s15, {4096*i}")
        a(f"v_lshl_add_u32 v{t1}, v{t0}, 4, v{t1}")
        a(f"buffer_load_dwordx4 v{t1}, s[20:23], s14 offen lds")
    def xload(c):
        for i in range(8):
            a(f"s_add_u32 m0, s38, {(c&1)*32768 + i*1024}")
            a(f"s_mov_b32 s39, {(i>>2)*16384 + c*256}")
            a(f"buffer_load_dwordx4 v{XVO+(i&3)}, s[16:19], s39 offen lds")
    def issueW(c):
        for i in range(6 * c, 6 * c + 6):
            wload(i)
    issueW(0); xload(0); issueW(1); xload(1); issueW(2); issueW(3)
    a(f"v_and_b32 v{t0}, 31, v{LANE}")
    a(f"v_lshrrev_b32 v{H2}, 5, v{LANE}")
    a(f"v_add_u32 v{TOK}, s13, v{t0}")
    a(f"v_and_b32 v{t1}, 15, v{t0}")
    a(f"v_lshlrev_b32 v{t2}, 1, v{H2}")
    a(f"v_xor_b32 v{t1}, v{t1}, v{t2}")
    a(f"v_lshlrev_b32 v{t0}, 8, v{t0}")
    a(f"v_add_u32 v{t0}, s38, v{t0}")
    for kcl in range(4):
        for st in range(2):
            a(f"v_xor_b32 v{t2}, {4*kcl|st}, v{t1}")
            a(f"v_lshl_add_u32 v{XAD+2*kcl+st}, v{t2}, 4, v{t0}")
    a(f"v_bfe_u32 v{t0}, v{LANE}, 2, 2")
    a(f"v_lshl_add_u32 v{VW}, v{H2}, 4, v{t0}")
    a(f"v_mul_u32_u24 v{VW}, 192, v{VW}")
    a(f"v_bfe_u32 v{t0}, v{LANE}, 4, 1")
    a(f"v_lshl_add_u32 v{VW}, v{t0}, 5, v{VW}")
    a(f"v_and_b32 v{t0}, 3, v{LANE}")
    a(f"v_lshl_add_u32 v{VW}, v{t0}, 3, v{VW}")
    a(f"v_add_u32 v{VW2}, 49152, v{VW}")
    for r in range(48):
        a(f"v_mov_b32 v{ACC+r}, 0")
    steps = [(kc, st) for kc in range(16) for st in range(2)]
    def rd(idx):
        kc, st = steps[idx]
        buf = idx % 3
        off = (32 * kc + 8 * st) * 192
        reg = VW
        if off >= 49152:
            off -= 49152; reg = VW2
        a(f"ds_read_b128 {vr(XF+4*buf,4)}, v{XAD+2*(kc&3)+st} offset:{((kc>>2)&1)*32768}")
        for ct in range(3):
            base = WF + buf * 12 + ct * 4
            a(f"ds_read_b64_tr_b16 {vr(base,2)}, v{reg} offset:{off+ct*64}")
            a(f"ds_read_b64_tr_b16 {vr(base+2,2)}, v{reg} offset:{off+ct*64+768}")
    waits = [26, 20, 8, 0]
    for c in range(4):
        a(f"s_waitcnt vmcnt({waits[c]})")
        if c == 0: stamp(a)
        a("s_barrier")
        if c == 0: stamp(a)
        rd(8 * c)
        rd(8 * c + 1)
        for idx in range(8 * c, 8 * c + 8):
            last = 8 * c + 7
            if idx < last:
                a("s_waitcnt lgkmcnt(7)")
            else:
                a("s_waitcnt lgkmcnt(0)")
                if c + 2 < 4:
                    xload(c + 2)
            if idx + 2 <= last:
                rd(idx + 2)
            buf = idx % 3
            for ct in range(3):
                wf = WF + buf * 12 + ct * 4
                acc = vr(ACC + 16 * ct, 16)
                a(f"v_mfma_f32_32x32x16_bf16 {acc}, {vr(wf,4)}, {vr(XF+4*buf,4)}, {acc}")
    a.nop(16)
    stamp(a)
    a(f"v_lshlrev_b32 v{t0}, 15, v{H2}")
    a(f"v_lshl_add_u32 v{t0}, v{TOK}, 4, v{t0}")
    a(f"v_mov_b32 v{t1}, 0")
    a("s_mul_i32 s28, s11, 3")
    a("s_lshr_b32 s35, s13, 3")
    for ct in range(3):
        src0 = ACC + 16 * ct
        a(f"s_add_u32 s29, s28, {ct}")
        a("s_lshr_b32 s30, s29, 4")
        a("s_and_b32 s31, s29, 15")
        a(f"s_mov_b32 s32, {hexf(QSCALE)}")
        a("s_cmp_eq_u32 s30, 0")
        a("s_cselect_b32 s32, s32, 1.0")
        for r in range(16):
            a(f"v_mul_f32 v{src0+r}, s32, v{src0+r}")
        lblNK = a.newlabel("qkv_nok")
        a("s_cmp_lg_u32 s30, 1")
        a(f"s_cbranch_scc1 {lblNK}")
        a("s_lshl_b32 s33, s31, 9")
        a("s_add_u32 s33, s33, s35")
        a(f"s_add_u32 s33, s33, {WS_KN}")
        for hl in range(2):
            src = src0 + 8 * hl
            q = WF + 2 * hl
            a(f"v_mul_f32 v{q}, v{src}, v{src}")
            for i in range(1, 8):
                a(f"v_fmac_f32 v{q}, v{src+i}, v{src+i}")
            a(f"v_mov_b32 v{q+1}, v{q}")
            a("s_nop 1")
            a(f"v_permlane32_swap_b32 v{q}, v{q+1}")
            a("s_nop 1")
            a(f"v_add_f32 v{q}, v{q}, v{q+1}")
            wave_max(a, q)
        a("s_mov_b32 s36, 0")
        a("s_mov_b32 s37, 0x80000000")
        a("s_mov_b64 exec, s[36:37]")
        for hl in range(2):
            a(f"buffer_store_dword v{WF+2*hl}, v{t1}, s[24:27], s33 offen offset:{hl*256}")
        a("s_mov_b64 exec, -1")
        a.label(lblNK)
        a("s_lshl_b32 s33, s30, 21")
        a("s_lshl_b32 s34, s31, 17")
        a("s_add_u32 s33, s33, s34")
        for hl in range(2):
            src = src0 + 8 * hl
            dst = EP + (ct * 2 + hl) * 4
            for i in range(4):
                a(f"v_cvt_pk_bf16_f32 v{dst+i}, v{src+2*i}, v{src+2*i+1}")
            a(f"buffer_store_dwordx4 {vr(dst,4)}, v{t0}, s[24:27], s33 offen" + os.environ.get("QST", " nt"))
            a("s_add_u32 s33, s33, 65536")
    a("s_waitcnt vmcnt(0)") if STAMP["on"] else None
    stamp(a)
    a.label(end)
```

```python
from asmlib import *
import math
import numpy as np
from k_attn import wave_max

L2E = float(np.float32(math.log2(math.e)))
L2E_LO = float(np.float32(math.log2(math.e) - L2E))
LN2 = float(np.float32(math.log(2.0)))
I2P = float(np.float32(1.0 / (2 * math.pi)))
I2P_LO = float(np.float32(1.0 / (2 * math.pi) - I2P))

KD = 0
KM = 6144
UC = KM + 15360
RED = UC + 35328
UMX = 73216
OST = KM
SCR = 6144
S4D_LDS = 73728
S4D_VGPR = 128
ROWS = 528
UCS = 4416
CHS = 57 * ROWS

class RA:
    def __init__(self, start):
        self.n = start
        self.hi = start
    def __call__(self, k=1, align=1):
        while self.n % align: self.n += 1
        r = self.n
        self.n += k
        self.hi = max(self.hi, self.n)
        return r
    def mark(self): return self.n
    def reset(self, m): self.n = m

def gen_s4d(a, wg_base=0):
    end = a.newlabel("s4_end")
    if wg_base:
        a(f"s_sub_u32 s2, s2, {wg_base}")
    a("s_cmp_ge_u32 s2, 256")
    a(f"s_cbranch_scc1 {end}")
    stamp_init(a)
    a("s_load_dwordx4 s[4:7], s[0:1], 0")
    a("s_load_dwordx4 s[8:11], s[0:1], 16")
    a("s_load_dwordx4 s[12:15], s[0:1], 32")
    a("s_load_dwordx2 s[16:17], s[0:1], 48")
    a("s_load_dwordx2 s[18:19], s[0:1], 80")
    a("s_and_b32 s20, s2, 7")
    a("s_lshl_b32 s20, s20, 5")
    a("s_lshr_b32 s21, s2, 3")
    a("s_add_u32 s20, s20, s21")
    a("s_lshl_b32 s20, s20, 1")
    R = RA(0)
    TID = R(); LANE = R(); CH = R(); NM = R()
    t0 = R(); t1 = R(); t2 = R(); t3 = R()
    a(f"v_mov_b32 v{TID}, v0")
    a(f"v_and_b32 v{LANE}, 63, v{TID}")
    a(f"v_lshrrev_b32 v{t0}, 6, v{TID}")
    a(f"v_lshrrev_b32 v{CH}, 7, v{TID}")
    a(f"v_and_b32 v{NM}, 127, v{TID}")
    a("s_nop 0")
    a(f"v_readfirstlane_b32 s22, v{t0}")
    a("s_waitcnt lgkmcnt(0)")
    a("s_lshr_b32 s23, s22, 1")
    a("s_and_b32 s24, s22, 1")
    srd(a, 28, 4, 2048 * 512 * 2)
    srd(a, 32, 6, 512 * 128 * 2)
    srd(a, 36, 8, 512 * 128 * 2)
    srd(a, 40, 10, 512 * 128 * 2)
    srd(a, 44, 12, 512 * 128 * 2)
    srd(a, 48, 14, 1024)
    srd(a, 52, 16, 1024)
    srd(a, 56, 18, 2048 * 1024 * 2)
    a("s_add_u32 s25, s20, s23")
    a("s_lshl_b32 s26, s25, 8")
    DSK = R(); KSC = R(); UR = R(8)
    mk = R.mark()
    LA = R(); AI = R(); CR = R(); CI = R(); LDT = R(); CR2 = R(); CI2 = R()
    a(f"v_lshlrev_b32 v{t0}, 1, v{NM}")
    a(f"v_xor_b32 v{t2}, 128, v{t0}")
    a(f"buffer_load_ushort v{LA}, v{t0}, s[32:35], s26 offen")
    a(f"buffer_load_ushort v{AI}, v{t0}, s[36:39], s26 offen")
    a(f"buffer_load_ushort v{CR}, v{t0}, s[40:43], s26 offen")
    a(f"buffer_load_ushort v{CI}, v{t0}, s[44:47], s26 offen")
    a(f"buffer_load_ushort v{CR2}, v{t2}, s[40:43], s26 offen")
    a(f"buffer_load_ushort v{CI2}, v{t2}, s[44:47], s26 offen")
    a("s_lshl_b32 s26, s25, 1")
    a(f"v_mov_b32 v{t1}, 0")
    a(f"buffer_load_ushort v{LDT}, v{t1}, s[48:51], s26 offen")
    a(f"buffer_load_ushort v{DSK}, v{t1}, s[52:55], s26 offen")
    a(f"v_lshlrev_b32 v{t2}, 10, v{TID}")
    a("s_lshl_b32 s26, s20, 1")
    for k in range(8):
        a(f"buffer_load_dword v{UR+k}, v{t2}, s[28:31], s26 offen")
        if k < 7:
            a("s_add_u32 s26, s26, 262144")
    a(f"s_mov_b32 s60, {hexf(L2E)}")
    a(f"s_mov_b32 s61, {hexf(L2E_LO)}")
    a(f"s_mov_b32 s62, {hexf(LN2)}")
    a(f"s_mov_b32 s63, {hexf(I2P)}")
    a(f"s_mov_b32 s64, {hexf(I2P_LO)}")
    a("s_mov_b32 s65, 0xffff0000")
    a("s_waitcnt vmcnt(8)")
    for r in (LA, AI, CR, CI, LDT, DSK, CR2, CI2):
        a(f"v_lshlrev_b32 v{r}, 16, v{r}")
    def exp_bf16(x):
        a(f"v_mul_f32 v{t0}, s60, v{x}")
        a(f"v_fma_f32 v{t1}, v{x}, s60, -v{t0}")
        a(f"v_fmac_f32 v{t1}, s61, v{x}")
        a(f"v_exp_f32 v{t0}, v{t0}")
        a(f"v_mul_f32 v{t1}, s62, v{t1}")
        a(f"v_fma_f32 v{t0}, v{t0}, v{t1}, v{t0}")
        a(f"v_cvt_pk_bf16_f32 v{t0}, v{t0}, v{t0}")
        a(f"v_lshlrev_b32 v{x}, 16, v{t0}")
    exp_bf16(LDT)
    exp_bf16(LA)
    ER = R(); FIH = R(); FIL = R()
    a(f"v_mul_f32 v{ER}, v{LA}, v{LDT}")
    a(f"v_mul_f32 v{ER}, -1.0, v{ER}")
    a(f"v_mul_f32 v{ER}, s60, v{ER}")
    a(f"v_mul_f32 v{AI}, v{AI}, v{LDT}")
    a(f"v_mul_f32 v{FIH}, s63, v{AI}")
    a(f"v_fma_f32 v{FIL}, v{AI}, s63, -v{FIH}")
    a(f"v_fmac_f32 v{FIL}, s64, v{AI}")
    a(f"v_max3_f32 v{t0}, abs(v{CR}), abs(v{CI}), abs(v{CR2})")
    a(f"v_max_f32 v{t0}, v{t0}, abs(v{CI2})")
    wave_max(a, t0)
    a(f"v_readlane_b32 s66, v{t0}, 63")
    a("s_nop 3")
    a(f"v_mov_b32 v{t0}, s66")
    a(f"v_frexp_exp_i32_f32 v{t1}, v{t0}")
    a(f"v_sub_u32 v{t2}, 0, v{t1}")
    a(f"v_ldexp_f32 v{CR}, v{CR}, v{t2}")
    a(f"v_ldexp_f32 v{CI}, v{CI}, v{t2}")
    a(f"v_sub_f32 v{CI}, 0, v{CI}")
    a(f"v_add_u32 v{t1}, 8, v{t1}")
    a(f"v_ldexp_f32 v{KSC}, v{LDT}, v{t1}")
    def pw(t, re, im, conj=False):
        a(f"s_mov_b32 s66, {hexf(float(t))}")
        a(f"v_mul_f32 v{t0}, s66, v{ER}")
        a(f"v_exp_f32 v{t0}, v{t0}")
        a(f"v_mul_f32 v{t1}, s66, v{FIH}")
        a(f"v_fract_f32 v{t1}, v{t1}")
        a(f"v_fmac_f32 v{t1}, s66, v{FIL}")
        a(f"v_cos_f32 v{t2}, v{t1}")
        a(f"v_sin_f32 v{t3}, v{t1}")
        a("s_nop 0")
        a(f"v_mul_f32 v{re}, v{t0}, v{t2}")
        if conj:
            a(f"v_mul_f32 v{im}, -v{t0}, v{t3}")
        else:
            a(f"v_mul_f32 v{im}, v{t0}, v{t3}")
    def cmul(d, x, w, t):
        a(f"v_pk_mul_f32 {vr(t,2)}, {vr(x,2)}, {vr(w,2)} op_sel:[1,1] op_sel_hi:[1,0] neg_lo:[0,1]")
        a(f"v_pk_fma_f32 {vr(d,2)}, {vr(x,2)}, {vr(w,2)}, {vr(t,2)} op_sel_hi:[0,1,1]")
    WFp = R(2, 2); WGp = R(2, 2); XF_ = R(2, 2); XG_ = R(2, 2); TF = R(2, 2); TG = R(2, 2); CP = R(2, 2)
    HF = R(); HG = R()
    SW = R(); SRD_ = R(); KDW = R()
    a(f"v_mov_b32 v{CP}, v{CR}")
    a(f"v_mov_b32 v{CP+1}, v{CI}")
    a(f"v_mul_u32_u24 v{SW}, {CHS}, v{CH}")
    a(f"v_lshl_add_u32 v{SW}, v{NM}, 2, v{SW}")
    a(f"v_add_u32 v{SW}, {SCR}, v{SW}")
    a(f"v_and_b32 v{t0}, 15, v{LANE}")
    a(f"v_mul_u32_u24 v{SRD_}, {ROWS}, v{t0}")
    a(f"v_lshrrev_b32 v{t1}, 4, v{LANE}")
    a(f"v_lshl_add_u32 v{SRD_}, v{t1}, 4, v{SRD_}")
    a(f"s_mul_i32 s26, s23, {CHS}")
    a(f"s_mul_i32 s27, s24, {16*ROWS}")
    a("s_add_u32 s26, s26, s27")
    a(f"s_add_u32 s26, s26, {SCR}")
    a(f"v_add_u32 v{SRD_}, s26, v{SRD_}")
    a(f"v_lshlrev_b32 v{KDW}, 8, v{t1}")
    a(f"v_lshl_add_u32 v{KDW}, v{t0}, 2, v{KDW}")
    a("s_mul_i32 s26, s23, 3072")
    a(f"v_add_u32 v{KDW}, s26, v{KDW}")
    FR = R(16, 4); DACC = R(4, 4)
    stamp(a)
    for rnd in range(2):
        for sl in range(2):
            s = 2 * rnd + sl
            nG = [16, 8, 8, 9][s]
            pw(2 ** s, WFp, WFp + 1)
            if s > 0:
                pw(128 * 2 ** s, WGp, WGp + 1, conj=True)
                cmul(XG_, CP, WGp, TG)
            else:
                a(f"v_mov_b32 v{XG_}, v{CR}")
                a(f"v_mov_b32 v{XG_+1}, v{CI}")
            pw(16 * 2 ** s, WGp, WGp + 1, conj=True)
            a(f"v_mov_b32 v{XF_}, 1.0")
            a(f"v_mov_b32 v{XF_+1}, 0")
            for r in range(16):
                a(f"v_cvt_pk_f16_f32 v{HF}, v{XF_}, v{XF_+1}")
                if r < nG:
                    a(f"v_cvt_pk_f16_f32 v{HG}, v{XG_}, v{XG_+1}")
                if r < 15:
                    a(f"v_pk_mul_f32 {vr(TF,2)}, {vr(XF_,2)}, {vr(WFp,2)} op_sel:[1,1] op_sel_hi:[1,0] neg_lo:[0,1]")
                if r < nG - 1:
                    a(f"v_pk_mul_f32 {vr(TG,2)}, {vr(XG_,2)}, {vr(WGp,2)} op_sel:[1,1] op_sel_hi:[1,0] neg_lo:[0,1]")
                a(f"ds_write_b32 v{SW}, v{HF} offset:{(16*sl+r)*ROWS}")
                if r < nG:
                    a(f"ds_write_b32 v{SW}, v{HG} offset:{(32+16*sl+r)*ROWS}")
                if r < 15:
                    a(f"v_pk_fma_f32 {vr(XF_,2)}, {vr(XF_,2)}, {vr(WFp,2)}, {vr(TF,2)} op_sel_hi:[0,1,1]")
                if r < nG - 1:
                    a(f"v_pk_fma_f32 {vr(XG_,2)}, {vr(XG_,2)}, {vr(WGp,2)}, {vr(TG,2)} op_sel_hi:[0,1,1]")
        a("s_waitcnt lgkmcnt(0)")
        a("s_barrier")
        for r in range(4):
            a(f"v_mov_b32 v{DACC+r}, 0")
        d = vr(DACC, 4)
        for kk in range(2):
            for ks in range(4):
                k8 = 4 * kk + ks
                a(f"ds_read_b128 {vr(FR+4*(ks&1),4)}, v{SRD_} offset:{32*ROWS + k8*64}")
                a(f"ds_read_b128 {vr(FR+8+4*(ks&1),4)}, v{SRD_} offset:{k8*64}")
                if ks & 1:
                    a("s_waitcnt lgkmcnt(0)")
                    a(f"v_mfma_f32_16x16x32_f16 {d}, {vr(FR,4)}, {vr(FR+8,4)}, {d}")
                    a(f"v_mfma_f32_16x16x32_f16 {d}, {vr(FR+4,4)}, {vr(FR+12,4)}, {d}")
        a.nop(10)
        a(f"s_lshl_b32 s26, s24, 9")
        a(f"s_add_u32 s26, s26, {(256*rnd+128)*4}")
        if rnd == 0:
            a("s_cmp_eq_u32 s24, 0")
            a("s_cselect_b32 s26, 0, s26")
        a(f"v_add_u32 v{t0}, s26, v{KDW}")
        if rnd == 0:
            pass
        for r in range(4):
            a(f"ds_write_b32 v{t0}, v{DACC+r} offset:{16*r*4}")
        a("s_waitcnt lgkmcnt(0)")
        a("s_barrier")
        if rnd == 1:
            lbl = a.newlabel("s4_rw")
            a("s_cmp_eq_u32 s24, 0")
            a(f"s_cbranch_scc1 {lbl}")
            for r in range(4):
                a(f"ds_write_b32 v{t0}, v{DACC+r} offset:{16*r*4}")
            a.label(lbl)
    R.reset(mk)
    stamp(a)
    M = [R(), R()]
    a("s_waitcnt vmcnt(0)")
    for c in range(2):
        for k in range(8):
            if c == 0:
                a(f"v_lshlrev_b32 v{t0}, 16, v{UR+k}")
            else:
                a(f"v_and_b32 v{t0}, s65, v{UR+k}")
            if k == 0:
                a(f"v_and_b32 v{M[c]}, 0x7fffffff, v{t0}")
            else:
                a(f"v_max_f32 v{M[c]}, v{M[c]}, abs(v{t0})")
        wave_max(a, M[c])
    a("s_lshl_b32 s26, s22, 3")
    a(f"s_add_u32 s26, s26, {UMX}")
    a(f"v_mov_b32 v{t0}, s26")
    a("s_mov_b32 s68, 0")
    a("s_mov_b32 s69, 0x80000000")
    a("s_mov_b64 exec, s[68:69]")
    a(f"ds_write_b64 v{t0}, {vr(M[0],2)}")
    a("s_mov_b64 exec, -1")
    Z = R(4, 4)
    for r in range(4):
        a(f"v_mov_b32 v{Z+r}, 0")
    a(f"v_lshlrev_b32 v{t0}, 4, v{TID}")
    a(f"v_add_u32 v{t1}, {UC}, v{t0}")
    for k in range(9):
        a(f"ds_write_b128 v{t1}, {vr(Z,4)} offset:{k*4096}")
    a(f"v_cmp_gt_u32 vcc, 155, v{TID}")
    a("s_and_saveexec_b64 s[68:69], vcc")
    for c in range(2):
        a(f"ds_write_b128 v{t0}, {vr(Z,4)} offset:{KM + c*7680}")
    a("s_mov_b64 exec, s[68:69]")
    a("s_waitcnt lgkmcnt(0)")
    a("s_barrier")
    FJ = R(); IDX = R(16); ALT = R()
    a("s_mul_i32 s26, s23, 3072")
    a(f"v_lshlrev_b32 v{t0}, 4, v{NM}")
    a(f"v_cvt_f32_u32 v{FJ}, v{t0}")
    a(f"v_lshlrev_b32 v{ALT}, 6, v{NM}")
    a(f"v_add_u32 v{ALT}, s26, v{ALT}")
    a(f"v_cmp_gt_u32 vcc, 8, v{NM}")
    a(f"s_sub_u32 s26, s26, {17024*4}")
    for p in range(8):
        e = 2 * p
        a(f"v_add_f32 v{t0}, {hexf(float(e))}, v{FJ}")
        a(f"v_add_f32 v{t1}, {hexf(float(e+1))}, v{FJ}")
        a(f"v_cvt_pk_bf16_f32 v{t0}, v{t0}, v{t1}")
        a(f"s_sub_u32 s27, s26, {4*e}")
        a(f"v_and_b32 v{t1}, 0xffff, v{t0}")
        a(f"v_lshl_add_u32 v{t1}, v{t1}, 2, s27")
        a(f"v_cndmask_b32 v{t1}, v{t1}, v{ALT}, vcc")
        a(f"ds_read_b32 v{IDX+e}, v{t1} offset:{4*e}")
        a(f"s_sub_u32 s27, s26, {4*(e+1)}")
        a(f"v_lshrrev_b32 v{t0}, 16, v{t0}")
        a(f"v_lshl_add_u32 v{t0}, v{t0}, 2, s27")
        a(f"v_cndmask_b32 v{t0}, v{t0}, v{ALT}, vcc")
        a(f"ds_read_b32 v{IDX+e+1}, v{t0} offset:{4*(e+1)}")
    UM = R(8, 4)
    a(f"v_mov_b32 v{t0}, {UMX}")
    a(f"ds_read_b128 {vr(UM,4)}, v{t0}")
    a(f"ds_read_b128 {vr(UM+4,4)}, v{t0} offset:16")
    KW = R()
    a(f"v_lshrrev_b32 v{t0}, 1, v{NM}")
    a(f"v_mul_u32_u24 v{KW}, 80, v{t0}")
    a(f"v_and_b32 v{t0}, 1, v{NM}")
    a(f"v_lshl_add_u32 v{KW}, v{t0}, 5, v{KW}")
    a(f"v_mul_u32_u24 v{t0}, 7680, v{CH}")
    a(f"v_add_u32 v{KW}, v{KW}, v{t0}")
    a(f"v_add_u32 v{KW}, {KM + 31*80}, v{KW}")
    HP = R(8, 4)
    a(f"s_mov_b32 s66, {hexf(2.0**-7)}")
    a("s_waitcnt lgkmcnt(0)")
    for p in range(8):
        a(f"v_mul_f32 v{IDX+2*p}, s66, v{IDX+2*p}")
        a(f"v_mul_f32 v{IDX+2*p+1}, s66, v{IDX+2*p+1}")
        a(f"v_cvt_pk_f16_f32 v{HP+p}, v{IDX+2*p}, v{IDX+2*p+1}")
    a(f"ds_write_b128 v{KW}, {vr(HP,4)}")
    a(f"ds_write_b128 v{KW}, {vr(HP+4,4)} offset:16")
    EU = [R(), R()]
    for c in range(2):
        a(f"v_max3_f32 v{t0}, v{UM+c}, v{UM+2+c}, v{UM+4+c}")
        a(f"v_max_f32 v{t0}, v{t0}, v{UM+6+c}")
        a(f"v_frexp_exp_i32_f32 v{t0}, v{t0}")
        a(f"v_sub_u32 v{EU[c]}, 15, v{t0}")
    a(f"v_cmp_eq_u32 vcc, 0, v{CH}")
    a("s_nop 1")
    a(f"v_cndmask_b32 v{t0}, v{EU[1]}, v{EU[0]}, vcc")
    a(f"v_sub_u32 v{t0}, 0, v{t0}")
    a(f"v_ldexp_f32 v{KSC}, v{KSC}, v{t0}")
    NEU = R()
    a(f"v_mov_b32 v{NEU}, v{t0}")
    stamp(a)
    UW = R()
    a(f"v_lshlrev_b32 v{t0}, 1, v{TID}")
    a(f"v_sub_u32 v{UW}, {UC + 2*2047 - 512*7}, v{t0}")
    for k in range(8):
        a(f"v_lshlrev_b32 v{t2}, 16, v{UR+k}")
        a(f"v_and_b32 v{t3}, s65, v{UR+k}")
        a(f"v_ldexp_f32 v{t2}, v{t2}, v{EU[0]}")
        a(f"v_ldexp_f32 v{t3}, v{t3}, v{EU[1]}")
        a(f"v_cvt_pk_f16_f32 v{t2}, v{t2}, v{t3}")
        for phi in range(4):
            off = phi * (UCS - 2) + 512 * (7 - k)
            need_mask = (k == 7 and phi > 0)
            if need_mask:
                a(f"v_cmp_gt_u32 vcc, {256-phi}, v{TID}")
                a("s_and_saveexec_b64 s[68:69], vcc")
            a(f"ds_write_b16 v{UW}, v{t2} offset:{off}")
            a(f"ds_write_b16_d16_hi v{UW}, v{t2} offset:{off+17664}")
            if need_mask:
                a("s_mov_b64 exec, s[68:69]")
    keepNEU = UR
    a(f"v_mov_b32 v{keepNEU}, v{NEU}")
    NEU = keepNEU
    R.reset(mk)
    a("s_waitcnt lgkmcnt(0)")
    a("s_barrier")
    stamp(a)
    A31 = R(); H2 = R(); VB = R(); VA = R()
    a(f"v_and_b32 v{A31}, 31, v{LANE}")
    a(f"v_lshrrev_b32 v{H2}, 5, v{LANE}")
    a(f"v_mul_u32_u24 v{VB}, 80, v{A31}")
    a(f"v_lshl_add_u32 v{VB}, v{H2}, 4, v{VB}")
    a("s_mul_i32 s26, s23, 7680")
    a(f"s_add_u32 s26, s26, {KM + 31*80}")
    a(f"v_add_u32 v{VB}, s26, v{VB}")
    a(f"v_and_b32 v{t0}, 3, v{A31}")
    a(f"v_sub_u32 v{t0}, 3, v{t0}")
    a(f"v_mul_u32_u24 v{VA}, {UCS}, v{t0}")
    a(f"v_lshrrev_b32 v{t0}, 2, v{A31}")
    a(f"v_lshlrev_b32 v{t0}, 3, v{t0}")
    a(f"v_sub_u32 v{VA}, v{VA}, v{t0}")
    a(f"v_lshl_add_u32 v{VA}, v{H2}, 4, v{VA}")
    a("s_mul_i32 s26, s23, 17664")
    a(f"s_add_u32 s26, s26, {UC + 2*2044}")
    a(f"v_add_u32 v{VA}, s26, v{VA}")
    ACC0 = R(16, 4); ACC1 = R(16, 4)
    for r in range(16):
        a(f"v_mov_b32 v{ACC0+r}, 0")
        a(f"v_mov_b32 v{ACC1+r}, 0")
    BF = [R(8, 4), R(8, 4)]
    AF = [R(16, 4), R(16, 4)]
    VBc = R(); VAc = R()
    c1 = vr(ACC1, 16); c0 = vr(ACC0, 16)
    def conv_range(d_hi, d_lo, two):
        n = d_hi - d_lo + 1
        assert n % 2 == 0
        nl = 2 + (8 if two else 4)
        a(f"v_add_u32 v{VBc}, {((d_hi-1)*80) & 0xffffffff}, v{VB}")
        a(f"v_add_u32 v{VAc}, {(-64*(32-d_hi+1)) & 0xffffffff}, v{VA}")
        def rd(buf, first):
            bo = 80 if first else 0
            ao = 64 if first else 0
            a(f"ds_read_b128 {vr(BF[buf],4)}, v{VBc} offset:{bo}")
            a(f"ds_read_b128 {vr(BF[buf]+4,4)}, v{VBc} offset:{bo+32}")
            for h in range(2):
                a(f"ds_read_b64 {vr(AF[buf]+4*h,2)}, v{VAc} offset:{ao+32*h}")
                a(f"ds_read_b64 {vr(AF[buf]+4*h+2,2)}, v{VAc} offset:{ao+32*h+8}")
            if two:
                for h in range(2):
                    a(f"ds_read_b64 {vr(AF[buf]+8+4*h,2)}, v{VAc} offset:{2048+ao+32*h}")
                    a(f"ds_read_b64 {vr(AF[buf]+8+4*h+2,2)}, v{VAc} offset:{2048+ao+32*h+8}")
        def mm(buf):
            for h in range(2):
                a(f"v_mfma_f32_32x32x16_f16 {c1}, {vr(AF[buf]+4*h,4)}, {vr(BF[buf]+4*h,4)}, {c1}")
                if two:
                    a(f"v_mfma_f32_32x32x16_f16 {c0}, {vr(AF[buf]+8+4*h,4)}, {vr(BF[buf]+4*h,4)}, {c0}")
        rd(0, True)
        a(f"s_mov_b32 s67, {n//2}")
        lp = a.newlabel("s4_conv")
        a.label(lp)
        rd(1, False)
        a(f"v_subrev_u32 v{VBc}, 160, v{VBc}")
        a(f"v_subrev_u32 v{VAc}, 128, v{VAc}")
        a(f"s_waitcnt lgkmcnt({nl})")
        mm(0)
        rd(0, True)
        a(f"s_waitcnt lgkmcnt({nl})")
        mm(1)
        a("s_sub_u32 s67, s67, 1")
        a("s_cmp_lg_u32 s67, 0")
        a(f"s_cbranch_scc1 {lp}")
        a("s_waitcnt lgkmcnt(0)")
    lblB = a.newlabel("s4_partB"); lblJ = a.newlabel("s4_join")
    a("s_cmp_eq_u32 s24, 1")
    a(f"s_cbranch_scc1 {lblB}")
    conv_range(32, 1, False)
    conv_range(0, -7, True)
    a(f"s_branch {lblJ}")
    a.label(lblB)
    conv_range(-8, -31, True)
    a.label(lblJ)
    a.nop(16)
    stamp(a)
    RW = R()
    a(f"v_lshlrev_b32 v{RW}, 2, v{LANE}")
    a("s_lshl_b32 s26, s22, 12")
    a(f"s_add_u32 s26, s26, {RED}")
    a(f"v_add_u32 v{t2}, s26, v{RW}")
    a("s_xor_b32 s27, s22, 1")
    a("s_lshl_b32 s27, s27, 12")
    a(f"s_add_u32 s27, s27, {RED}")
    a(f"v_add_u32 v{t3}, s27, v{RW}")
    lblB2 = a.newlabel("s4_xB"); lblJ2 = a.newlabel("s4_xJ")
    a("s_cmp_eq_u32 s24, 1")
    a(f"s_cbranch_scc1 {lblB2}")
    for r in range(16):
        a(f"ds_write_b32 v{t2}, v{ACC0+r} offset:{r*256}")
    a(f"s_branch {lblJ2}")
    a.label(lblB2)
    for r in range(16):
        a(f"ds_write_b32 v{t2}, v{ACC1+r} offset:{r*256}")
    for r in range(16):
        a(f"v_mov_b32 v{ACC1+r}, v{ACC0+r}")
    a.label(lblJ2)
    a("s_waitcnt lgkmcnt(0)")
    a("s_barrier")
    for r in range(16):
        a(f"ds_read_b32 v{ACC0+r}, v{t3} offset:{r*256}")
    LB = R()
    a("s_xor_b32 s26, s24, 1")
    a("s_lshl_b32 s26, s26, 10")
    a(f"v_lshlrev_b32 v{LB}, 5, v{A31}")
    a(f"v_lshl_add_u32 v{LB}, v{H2}, 2, v{LB}")
    a(f"v_add_u32 v{LB}, s26, v{LB}")
    a("s_mul_i32 s26, s23, 17664")
    a(f"s_add_u32 s26, s26, {UC + 2*2044 - 48}")
    a(f"v_lshlrev_b32 v{t0}, 1, v{LB}")
    a(f"v_sub_u32 v{t0}, s26, v{t0}")
    UV = AF[0]
    for i in range(4):
        a(f"ds_read_b64 {vr(UV+2*i,2)}, v{t0} offset:{48-16*i}")
    a(f"v_lshlrev_b32 v{t2}, 1, v{LB}")
    a("s_lshl_b32 s26, s23, 12")
    a(f"s_add_u32 s26, s26, {OST}")
    a(f"v_add_u32 v{t2}, s26, v{t2}")
    a("s_waitcnt lgkmcnt(0)")
    UF = AF[1]; OP = BF[0]
    for i in range(4):
        a(f"v_cvt_f32_f16 v{UF+3}, v{UV+2*i}")
        a(f"v_lshrrev_b32 v{t0}, 16, v{UV+2*i}")
        a(f"v_cvt_f32_f16 v{UF+2}, v{t0}")
        a(f"v_cvt_f32_f16 v{UF+1}, v{UV+2*i+1}")
        a(f"v_lshrrev_b32 v{t0}, 16, v{UV+2*i+1}")
        a(f"v_cvt_f32_f16 v{UF+0}, v{t0}")
        for jj in range(4):
            r = 4 * i + jj
            a(f"v_add_f32 v{ACC1+r}, v{ACC1+r}, v{ACC0+r}")
            a(f"v_mul_f32 v{ACC1+r}, v{ACC1+r}, v{KSC}")
            a(f"v_ldexp_f32 v{UF+jj}, v{UF+jj}, v{NEU}")
            a(f"v_mul_f32 v{UF+jj}, v{UF+jj}, v{DSK}")
            a(f"v_cvt_pk_bf16_f32 v{t0}, v{ACC1+r}, v{UF+jj}")
            a(f"v_lshlrev_b32 v{t1}, 16, v{t0}")
            a(f"v_and_b32 v{t0}, s65, v{t0}")
            a(f"v_add_f32 v{UF+4+jj}, v{t0}, v{t1}")
        a(f"v_cvt_pk_bf16_f32 v{OP+2*i}, v{UF+4}, v{UF+5}")
        a(f"v_cvt_pk_bf16_f32 v{OP+2*i+1}, v{UF+6}, v{UF+7}")
        a(f"ds_write_b64 v{t2}, {vr(OP+2*i,2)} offset:{16*i}")
    a("s_waitcnt lgkmcnt(0)")
    a("s_barrier")
    a(f"v_lshlrev_b32 v{t0}, 1, v{TID}")
    a(f"v_add_u32 v{t0}, {OST}, v{t0}")
    O0 = ACC0; O1 = ACC0 + 8
    for k in range(8):
        a(f"ds_read_u16 v{O0+k}, v{t0} offset:{k*512}")
        a(f"ds_read_u16 v{O1+k}, v{t0} offset:{4096+k*512}")
    a(f"v_lshlrev_b32 v{t1}, 11, v{TID}")
    a("s_lshl_b32 s26, s20, 1")
    a("s_waitcnt lgkmcnt(0)")
    for k in range(8):
        a(f"v_lshl_or_b32 v{O0+k}, v{O1+k}, 16, v{O0+k}")
        a(f"buffer_store_dword v{O0+k}, v{t1}, s[56:59], s26 offen")
        if k < 7:
            a("s_add_u32 s26, s26, 524288")
    a("s_waitcnt vmcnt(0)") if STAMP["on"] else None
    stamp(a)
    a.label(end)
    assert R.hi <= S4D_VGPR, R.hi
```

```python
import sys
from asmlib import *
from k_gemm import *
from k_attn import wave_max
from k_attn5 import *
from k_qkv5 import *
try:
    from k_s4d import *
    HAVE_S4D = True
except ImportError:
    HAVE_S4D = False

import os
FORCE_SLOW = bool(os.environ.get("FORCE_SLOW"))
NAME = "concat_heads__ssm_conv_s4d__softmax_full_mha__prompt"
hdr = open(f"cdna_kernels/{NAME}.s.ref").read().split("; Override launch geometry")[0]

def build(diag=False):
    STAMP["on"] = diag
    V = (lambda n: 256 if n > 128 else 128) if diag else (lambda n: n)
    a = Asm()
    launches = []
    descs = []
    a.raw('.amdgcn_target "amdgcn-amd-amdhsa--gfx950"')
    kernel_header(a, "qkv_kernel"); gen_qkv5(a); a("s_endpgm")
    launches.append(f"; @launch kernel=qkv_kernel grid=(256,1,1) block=(256,1,1) lds={QKV_LDS}")
    descs.append(kernel_desc("qkv_kernel", V(QKV_VGPR)))
    kernel_header(a, "mid_kernel")
    lbl = a.newlabel("mid_s4d")
    a("s_cmp_ge_u32 s2, 256")
    a(f"s_cbranch_scc1 {lbl}")
    gen_attn(a, force_slow=FORCE_SLOW); a("s_endpgm")
    a.label(lbl)
    lbl2 = a.newlabel("mid_exit")
    a("v_cmp_gt_u32 vcc, 256, v0")
    a("s_nop 1")
    a(f"s_cbranch_vccz {lbl2}")
    a("s_setprio 3")
    gen_conv(a, wg_base=256)
    a.label(lbl2)
    a("s_endpgm")
    assert ATTN_LDS == S4D_LDS
    launches.append(f"; @launch kernel=mid_kernel grid=(512,1,1) block=(512,1,1) lds={ATTN_LDS}")
    descs.append(kernel_desc("mid_kernel", 128))
    kernel_header(a, "fin_kernel")
    gen_oproj(a); a("s_endpgm")
    launches.append(f"; @launch kernel=fin_kernel grid=(256,1,1) block=(256,1,1) lds=65536")
    descs.append(kernel_desc("fin_kernel", 256))
    return hdr + "\n".join(launches) + "\n" + a.text() + "".join(descs)

def build_sep(diag=False):
    STAMP["on"] = diag
    V = (lambda n: 256 if n > 128 else 128) if diag else (lambda n: n)
    a = Asm()
    launches = []
    descs = []
    a.raw('.amdgcn_target "amdgcn-amd-amdhsa--gfx950"')
    kernel_header(a, "qkv_kernel"); gen_qkv5(a); a("s_endpgm")
    launches.append(f"; @launch kernel=qkv_kernel grid=(256,1,1) block=(256,1,1) lds={QKV_LDS}")
    descs.append(kernel_desc("qkv_kernel", V(QKV_VGPR)))
    kernel_header(a, "s4d_kernel"); gen_s4d(a); a("s_endpgm")
    launches.append(f"; @launch kernel=s4d_kernel grid=(256,1,1) block=(256,1,1) lds={S4D_LDS}")
    descs.append(kernel_desc("s4d_kernel", V(S4D_VGPR)))
    kernel_header(a, "attn_kernel"); gen_attn(a, force_slow=FORCE_SLOW); a("s_endpgm")
    launches.append(f"; @launch kernel=attn_kernel grid=(256,1,1) block=({ATTN_BLOCK},1,1) lds={ATTN_LDS}")
    descs.append(kernel_desc("attn_kernel", V(ATTN_VGPR)))
    kernel_header(a, "fin_kernel")
    gen_oproj(a); a("s_endpgm")
    launches.append(f"; @launch kernel=fin_kernel grid=(256,1,1) block=(256,1,1) lds=65536")
    descs.append(kernel_desc("fin_kernel", 256))
    return hdr + "\n".join(launches) + "\n" + a.text() + "".join(descs)

if __name__ == "__main__":
    out = sys.argv[1] if len(sys.argv) > 1 else f"cdna_kernels/{NAME}.s"
    b = build_sep if os.environ.get("SEP") else build
    open(out, "w").write(b(diag=(len(sys.argv) > 2)))
    print("wrote", out)
```

```python
from asmlib import *
import math
import numpy as np
from k_attn import wave_max
from k_gemm import MB

L2E = float(np.float32(math.log2(math.e)))
L2E_LO = float(np.float32(math.log2(math.e) - L2E))
LN2 = float(np.float32(math.log(2.0)))
I2P = float(np.float32(1.0 / (2 * math.pi)))
I2P_LO = float(np.float32(1.0 / (2 * math.pi) - I2P))
WS_KP = 9 * MB
WS_KS = 11 * MB
WS_ALL = 12 * MB
ROWS = 528
CHS = 57 * ROWS
KD = 0
SCR = 6144

def kgen_prefetch(a, PR, TIDREG):
    a("s_load_dwordx4 s[40:43], s[0:1], 8")
    a("s_load_dwordx4 s[44:47], s[0:1], 24")
    a("s_load_dwordx2 s[48:49], s[0:1], 40")
    a("s_waitcnt lgkmcnt(0)")
    srd(a, 52, 40, 512 * 128 * 2)
    srd(a, 56, 42, 512 * 128 * 2)
    srd(a, 60, 44, 512 * 128 * 2)
    srd(a, 64, 46, 512 * 128 * 2)
    srd(a, 68, 48, 1024)
    LA, AI, CR, CI, LDT, CR2, CI2 = range(PR, PR + 7)
    t0 = PR + 7; t1 = PR + 8
    a("s_lshl_b32 s50, s2, 9")
    a(f"v_lshlrev_b32 v{t0}, 1, v{TIDREG}")
    a(f"v_xor_b32 v{t1}, 128, v{t0}")
    a(f"buffer_load_ushort v{LA}, v{t0}, s[52:55], s50 offen")
    a(f"buffer_load_ushort v{AI}, v{t0}, s[56:59], s50 offen")
    a(f"buffer_load_ushort v{CR}, v{t0}, s[60:63], s50 offen")
    a(f"buffer_load_ushort v{CI}, v{t0}, s[64:67], s50 offen")
    a(f"buffer_load_ushort v{CR2}, v{t1}, s[60:63], s50 offen")
    a(f"buffer_load_ushort v{CI2}, v{t1}, s[64:67], s50 offen")
    a(f"v_lshrrev_b32 v{t0}, 7, v{TIDREG}")
    a(f"v_lshlrev_b32 v{t0}, 1, v{t0}")
    a("s_lshl_b32 s50, s2, 2")
    a(f"buffer_load_ushort v{LDT}, v{t0}, s[68:71], s50 offen")

def kgen_tail(a, PR, TIDREG, LANEREG, wave_s, ws_srd):
    from k_s4d import RA
    LA, AI, CR, CI, LDT, CR2, CI2 = range(PR, PR + 7)
    R = RA(0)
    TID = TIDREG; LANE = LANEREG
    CH = R(); NM = R(); t0 = R(); t1 = R(); t2 = R(); t3 = R(); KSC = R()
    a(f"v_lshrrev_b32 v{CH}, 7, v{TID}")
    a(f"v_and_b32 v{NM}, 127, v{TID}")
    a(f"s_lshr_b32 s72, {wave_s}, 1")
    a(f"s_and_b32 s73, {wave_s}, 1")
    a(f"s_mov_b32 s40, {hexf(L2E)}")
    a(f"s_mov_b32 s41, {hexf(L2E_LO)}")
    a(f"s_mov_b32 s42, {hexf(LN2)}")
    a(f"s_mov_b32 s43, {hexf(I2P)}")
    a(f"s_mov_b32 s44, {hexf(I2P_LO)}")
    for r in (LA, AI, CR, CI, LDT, CR2, CI2):
        a(f"v_lshlrev_b32 v{r}, 16, v{r}")
    def exp_bf16(x):
        a(f"v_mul_f32 v{t0}, s40, v{x}")
        a(f"v_fma_f32 v{t1}, v{x}, s40, -v{t0}")
        a(f"v_fmac_f32 v{t1}, s41, v{x}")
        a(f"v_exp_f32 v{t0}, v{t0}")
        a(f"v_mul_f32 v{t1}, s42, v{t1}")
        a(f"v_fma_f32 v{t0}, v{t0}, v{t1}, v{t0}")
        a(f"v_cvt_pk_bf16_f32 v{t0}, v{t0}, v{t0}")
        a(f"v_lshlrev_b32 v{x}, 16, v{t0}")
    exp_bf16(LDT)
    exp_bf16(LA)
    ER = R(); FIH = R(); FIL = R()
    a(f"v_mul_f32 v{ER}, v{LA}, v{LDT}")
    a(f"v_mul_f32 v{ER}, -1.0, v{ER}")
    a(f"v_mul_f32 v{ER}, s40, v{ER}")
    a(f"v_mul_f32 v{AI}, v{AI}, v{LDT}")
    a(f"v_mul_f32 v{FIH}, s43, v{AI}")
    a(f"v_fma_f32 v{FIL}, v{AI}, s43, -v{FIH}")
    a(f"v_fmac_f32 v{FIL}, s44, v{AI}")
    a(f"v_max3_f32 v{t0}, abs(v{CR}), abs(v{CI}), abs(v{CR2})")
    a(f"v_max_f32 v{t0}, v{t0}, abs(v{CI2})")
    wave_max(a, t0)
    a(f"v_readlane_b32 s45, v{t0}, 63")
    a("s_nop 3")
    a(f"v_mov_b32 v{t0}, s45")
    a(f"v_frexp_exp_i32_f32 v{t1}, v{t0}")
    a(f"v_sub_u32 v{t2}, 0, v{t1}")
    a(f"v_ldexp_f32 v{CR}, v{CR}, v{t2}")
    a(f"v_ldexp_f32 v{CI}, v{CI}, v{t2}")
    a(f"v_sub_f32 v{CI}, 0, v{CI}")
    a(f"v_add_u32 v{t1}, 8, v{t1}")
    a(f"v_ldexp_f32 v{KSC}, v{LDT}, v{t1}")
    def pw(t, re, im, conj=False):
        a(f"s_mov_b32 s45, {hexf(float(t))}")
        a(f"v_mul_f32 v{t0}, s45, v{ER}")
        a(f"v_exp_f32 v{t0}, v{t0}")
        a(f"v_mul_f32 v{t1}, s45, v{FIH}")
        a(f"v_fract_f32 v{t1}, v{t1}")
        a(f"v_fmac_f32 v{t1}, s45, v{FIL}")
        a(f"v_cos_f32 v{t2}, v{t1}")
        a(f"v_sin_f32 v{t3}, v{t1}")
        a("s_nop 0")
        a(f"v_mul_f32 v{re}, v{t0}, v{t2}")
        a(f"v_mul_f32 v{im}, {'-' if conj else ''}v{t0}, v{t3}")
    def cmul(d, x, w, t):
        a(f"v_pk_mul_f32 {vr(t,2)}, {vr(x,2)}, {vr(w,2)} op_sel:[1,1] op_sel_hi:[1,0] neg_lo:[0,1]")
        a(f"v_pk_fma_f32 {vr(d,2)}, {vr(x,2)}, {vr(w,2)}, {vr(t,2)} op_sel_hi:[0,1,1]")
    WFp = R(2, 2); WGp = R(2, 2); XF_ = R(2, 2); XG_ = R(2, 2); TF = R(2, 2); TG = R(2, 2); CP = R(2, 2)
    HF = R(); HG = R(); SW = R(); SRD_ = R(); KDW = R()
    a(f"v_mov_b32 v{CP}, v{CR}")
    a(f"v_mov_b32 v{CP+1}, v{CI}")
    a(f"v_mul_u32_u24 v{SW}, {CHS}, v{CH}")
    a(f"v_lshl_add_u32 v{SW}, v{NM}, 2, v{SW}")
    a(f"v_add_u32 v{SW}, {SCR}, v{SW}")
    a(f"v_and_b32 v{t0}, 15, v{LANE}")
    a(f"v_mul_u32_u24 v{SRD_}, {ROWS}, v{t0}")
    a(f"v_lshrrev_b32 v{t1}, 4, v{LANE}")
    a(f"v_lshl_add_u32 v{SRD_}, v{t1}, 4, v{SRD_}")
    a(f"s_mul_i32 s46, s72, {CHS}")
    a(f"s_mul_i32 s47, s73, {16*ROWS}")
    a("s_add_u32 s46, s46, s47")
    a(f"s_add_u32 s46, s46, {SCR}")
    a(f"v_add_u32 v{SRD_}, s46, v{SRD_}")
    a(f"v_lshlrev_b32 v{KDW}, 8, v{t1}")
    a(f"v_lshl_add_u32 v{KDW}, v{t0}, 2, v{KDW}")
    a("s_mul_i32 s46, s72, 3072")
    a(f"v_add_u32 v{KDW}, s46, v{KDW}")
    FR = R(16, 4); DACC = R(4, 4)
    for rnd in range(2):
        for sl in range(2):
            s = 2 * rnd + sl
            nG = [16, 8, 8, 9][s]
            pw(2 ** s, WFp, WFp + 1)
            if s > 0:
                pw(128 * 2 ** s, WGp, WGp + 1, conj=True)
                cmul(XG_, CP, WGp, TG)
            else:
                a(f"v_mov_b32 v{XG_}, v{CR}")
                a(f"v_mov_b32 v{XG_+1}, v{CI}")
            pw(16 * 2 ** s, WGp, WGp + 1, conj=True)
            a(f"v_mov_b32 v{XF_}, 1.0")
            a(f"v_mov_b32 v{XF_+1}, 0")
            for r in range(16):
                a(f"v_cvt_pk_f16_f32 v{HF}, v{XF_}, v{XF_+1}")
                if r < nG:
                    a(f"v_cvt_pk_f16_f32 v{HG}, v{XG_}, v{XG_+1}")
                if r < 15:
                    a(f"v_pk_mul_f32 {vr(TF,2)}, {vr(XF_,2)}, {vr(WFp,2)} op_sel:[1,1] op_sel_hi:[1,0] neg_lo:[0,1]")
                if r < nG - 1:
                    a(f"v_pk_mul_f32 {vr(TG,2)}, {vr(XG_,2)}, {vr(WGp,2)} op_sel:[1,1] op_sel_hi:[1,0] neg_lo:[0,1]")
                a(f"ds_write_b32 v{SW}, v{HF} offset:{(16*sl+r)*ROWS}")
                if r < nG:
                    a(f"ds_write_b32 v{SW}, v{HG} offset:{(32+16*sl+r)*ROWS}")
                if r < 15:
                    a(f"v_pk_fma_f32 {vr(XF_,2)}, {vr(XF_,2)}, {vr(WFp,2)}, {vr(TF,2)} op_sel_hi:[0,1,1]")
                if r < nG - 1:
                    a(f"v_pk_fma_f32 {vr(XG_,2)}, {vr(XG_,2)}, {vr(WGp,2)}, {vr(TG,2)} op_sel_hi:[0,1,1]")
        a("s_waitcnt lgkmcnt(0)")
        a("s_barrier")
        for r in range(4):
            a(f"v_mov_b32 v{DACC+r}, 0")
        d = vr(DACC, 4)
        for kk in range(2):
            for ks in range(4):
                k8 = 4 * kk + ks
                a(f"ds_read_b128 {vr(FR+4*(ks&1),4)}, v{SRD_} offset:{32*ROWS + k8*64}")
                a(f"ds_read_b128 {vr(FR+8+4*(ks&1),4)}, v{SRD_} offset:{k8*64}")
                if ks & 1:
                    a("s_waitcnt lgkmcnt(0)")
                    a(f"v_mfma_f32_16x16x32_f16 {d}, {vr(FR,4)}, {vr(FR+8,4)}, {d}")
                    a(f"v_mfma_f32_16x16x32_f16 {d}, {vr(FR+4,4)}, {vr(FR+12,4)}, {d}")
        a.nop(10)
        a(f"s_lshl_b32 s46, s73, 9")
        a(f"s_add_u32 s46, s46, {(256*rnd+128)*4}")
        if rnd == 0:
            a("s_cmp_eq_u32 s73, 0")
            a("s_cselect_b32 s46, 0, s46")
        a(f"v_add_u32 v{t0}, s46, v{KDW}")
        for r in range(4):
            a(f"ds_write_b32 v{t0}, v{DACC+r} offset:{16*r*4}")
        a("s_waitcnt lgkmcnt(0)")
        a("s_barrier")
        if rnd == 1:
            lbl = a.newlabel("kg_rw")
            a("s_cmp_eq_u32 s73, 0")
            a(f"s_cbranch_scc1 {lbl}")
            for r in range(4):
                a(f"ds_write_b32 v{t0}, v{DACC+r} offset:{16*r*4}")
            a.label(lbl)
            a("s_waitcnt lgkmcnt(0)")
            a("s_barrier")
    FJ = R(); IDX = R(16); ALT = R(); HP = R(8, 4)
    a("s_mul_i32 s46, s72, 3072")
    a(f"v_lshlrev_b32 v{t0}, 4, v{NM}")
    a(f"v_cvt_f32_u32 v{FJ}, v{t0}")
    a(f"v_lshlrev_b32 v{ALT}, 6, v{NM}")
    a(f"v_add_u32 v{ALT}, s46, v{ALT}")
    a(f"v_cmp_gt_u32 vcc, 8, v{NM}")
    a(f"s_sub_u32 s46, s46, {17024*4}")
    for p in range(8):
        e = 2 * p
        a(f"v_add_f32 v{t0}, {hexf(float(e))}, v{FJ}")
        a(f"v_add_f32 v{t1}, {hexf(float(e+1))}, v{FJ}")
        a(f"v_cvt_pk_bf16_f32 v{t0}, v{t0}, v{t1}")
        a(f"s_sub_u32 s47, s46, {4*e}")
        a(f"v_and_b32 v{t1}, 0xffff, v{t0}")
        a(f"v_lshl_add_u32 v{t1}, v{t1}, 2, s47")
        a(f"v_cndmask_b32 v{t1}, v{t1}, v{ALT}, vcc")
        a(f"ds_read_b32 v{IDX+e}, v{t1} offset:{4*e}")
        a(f"s_sub_u32 s47, s46, {4*(e+1)}")
        a(f"v_lshrrev_b32 v{t0}, 16, v{t0}")
        a(f"v_lshl_add_u32 v{t0}, v{t0}, 2, s47")
        a(f"v_cndmask_b32 v{t0}, v{t0}, v{ALT}, vcc")
        a(f"ds_read_b32 v{IDX+e+1}, v{t0} offset:{4*(e+1)}")
    a(f"s_mov_b32 s45, {hexf(2.0**-7)}")
    a("s_waitcnt lgkmcnt(0)")
    for p in range(8):
        a(f"v_mul_f32 v{IDX+2*p}, s45, v{IDX+2*p}")
        a(f"v_mul_f32 v{IDX+2*p+1}, s45, v{IDX+2*p+1}")
        a(f"v_cvt_pk_f16_f32 v{HP+p}, v{IDX+2*p}, v{IDX+2*p+1}")
    a("s_lshl_b32 s46, s2, 13")
    a(f"s_add_u32 s46, s46, {WS_KP}")
    a(f"v_lshlrev_b32 v{t0}, 5, v{TID}")
    a(f"buffer_store_dwordx4 {vr(HP,4)}, v{t0}, {ws_srd}, s46 offen nt")
    a(f"buffer_store_dwordx4 {vr(HP+4,4)}, v{t0}, {ws_srd}, s46 offen offset:16 nt")
    lbl = a.newlabel("kg_ks")
    a("s_cmp_eq_u32 s73, 1")
    a(f"s_cbranch_scc1 {lbl}")
    a("s_lshl_b32 s46, s2, 3")
    a("s_lshl_b32 s47, s72, 2")
    a("s_add_u32 s46, s46, s47")
    a(f"s_add_u32 s46, s46, {WS_KS}")
    a(f"v_mov_b32 v{t0}, 0")
    a("s_mov_b64 exec, 1")
    a(f"buffer_store_dword v{KSC}, v{t0}, {ws_srd}, s46 offen")
    a("s_mov_b64 exec, -1")
    a.label(lbl)
    assert R.hi <= PR, (R.hi, PR)
```

```python
from asmlib import *
import os
from k_gemm import WS_Q, WS_K, WS_V, WS_O, WS_KN, WS_TOTAL, QSCALE, MB
from k_attn import wave_max
from k_kgen import kgen_prefetch, kgen_tail, WS_ALL

QKV_LDS = 163840
QKV_VGPR = 128
XB = 98304

def gen_qkv5(a, wg_base=0):
    end = a.newlabel("qkv_end")
    if wg_base:
        a(f"s_sub_u32 s2, s2, {wg_base}")
    a("s_cmp_ge_u32 s2, 256")
    a(f"s_cbranch_scc1 {end}")
    stamp_init(a)
    a("s_load_dwordx2 s[4:5], s[0:1], 56")
    a("s_load_dwordx2 s[6:7], s[0:1], 64")
    a("s_load_dwordx2 s[8:9], s[0:1], 96")
    a("s_and_b32 s13, s2, 3")
    a("s_lshl_b32 s13, s13, 2")
    a("s_bfe_u32 s10, s2, 0x20003")
    a("s_add_u32 s10, s10, s13")
    a("s_bfe_u32 s13, s2, 0x10002")
    a("s_lshl_b32 s13, s13, 3")
    a("s_lshr_b32 s11, s2, 5")
    a("s_add_u32 s11, s11, s13")
    ACC = 0; WF = 48; XF = 84; XAD = 96; XVO = 104
    TID, LANE, H2, TOK, VW, VW2, t0, t1, t2 = range(108, 117)
    EP = 52
    a(f"v_mov_b32 v{TID}, v0")
    a(f"v_and_b32 v{LANE}, 63, v{TID}")
    a(f"v_lshrrev_b32 v{t0}, 6, v{TID}")
    a("s_nop 0")
    a(f"v_readfirstlane_b32 s12, v{t0}")
    a("s_waitcnt lgkmcnt(0)")
    srd(a, 16, 4, 2 * MB)
    srd(a, 20, 6, 512 * 1536 * 2)
    srd(a, 24, 8, WS_ALL)
    PR = 117
    kgen_prefetch(a, PR, TID)
    a("s_mul_i32 s14, s11, 192")
    a("s_lshl_b32 s13, s10, 7")
    a("s_lshl_b32 s15, s12, 5")
    a("s_add_u32 s13, s13, s15")
    a("s_lshl_b32 s15, s12, 10")
    a("s_lshl_b32 s38, s12, 13")
    a(f"s_add_u32 s38, s38, {XB}")
    a(f"v_lshrrev_b32 v{t0}, 4, v{LANE}")
    a(f"v_and_b32 v{t1}, 15, v{LANE}")
    for i in range(4):
        a(f"v_add_u32 v{t2}, {4*i}, v{t0}")
        a(f"v_xor_b32 v{XVO+i}, v{t1}, v{t2}")
        a(f"v_lshlrev_b32 v{XVO+i}, 4, v{XVO+i}")
        a(f"v_add_u32 v{t2}, s13, v{t2}")
        a(f"v_lshl_add_u32 v{XVO+i}, v{t2}, 10, v{XVO+i}")
    def wload(i):
        a(f"v_add_u32 v{t0}, {256*i}, v{TID}")
        a(f"v_mul_u32_u24 v{t1}, 43691, v{t0}")
        a(f"v_lshrrev_b32 v{t1}, 19, v{t1}")
        a(f"v_mul_u32_u24 v{t1}, 2880, v{t1}")
        a(f"s_add_u32 m0, s15, {4096*i}")
        a(f"v_lshl_add_u32 v{t1}, v{t0}, 4, v{t1}")
        a(f"buffer_load_dwordx4 v{t1}, s[20:23], s14 offen lds")
    def xload(c):
        for i in range(8):
            a(f"s_add_u32 m0, s38, {(c&1)*32768 + i*1024}")
            a(f"s_mov_b32 s39, {(i>>2)*16384 + c*256}")
            a(f"buffer_load_dwordx4 v{XVO+(i&3)}, s[16:19], s39 offen lds")
    def issueW(c):
        for i in range(6 * c, 6 * c + 6):
            wload(i)
    issueW(0); xload(0); issueW(1); xload(1); issueW(2); issueW(3)
    a(f"v_and_b32 v{t0}, 31, v{LANE}")
    a(f"v_lshrrev_b32 v{H2}, 5, v{LANE}")
    a(f"v_add_u32 v{TOK}, s13, v{t0}")
    a(f"v_and_b32 v{t1}, 15, v{t0}")
    a(f"v_lshlrev_b32 v{t2}, 1, v{H2}")
    a(f"v_xor_b32 v{t1}, v{t1}, v{t2}")
    a(f"v_lshlrev_b32 v{t0}, 8, v{t0}")
    a(f"v_add_u32 v{t0}, s38, v{t0}")
    for kcl in range(4):
        for st in range(2):
            a(f"v_xor_b32 v{t2}, {4*kcl|st}, v{t1}")
            a(f"v_lshl_add_u32 v{XAD+2*kcl+st}, v{t2}, 4, v{t0}")
    a(f"v_bfe_u32 v{t0}, v{LANE}, 2, 2")
    a(f"v_lshl_add_u32 v{VW}, v{H2}, 4, v{t0}")
    a(f"v_mul_u32_u24 v{VW}, 192, v{VW}")
    a(f"v_bfe_u32 v{t0}, v{LANE}, 4, 1")
    a(f"v_lshl_add_u32 v{VW}, v{t0}, 5, v{VW}")
    a(f"v_and_b32 v{t0}, 3, v{LANE}")
    a(f"v_lshl_add_u32 v{VW}, v{t0}, 3, v{VW}")
    a(f"v_add_u32 v{VW2}, 49152, v{VW}")
    for r in range(48):
        a(f"v_mov_b32 v{ACC+r}, 0")
    steps = [(kc, st) for kc in range(16) for st in range(2)]
    def rd(idx):
        kc, st = steps[idx]
        buf = idx % 3
        off = (32 * kc + 8 * st) * 192
        reg = VW
        if off >= 49152:
            off -= 49152; reg = VW2
        a(f"ds_read_b128 {vr(XF+4*buf,4)}, v{XAD+2*(kc&3)+st} offset:{((kc>>2)&1)*32768}")
        for ct in range(3):
            base = WF + buf * 12 + ct * 4
            a(f"ds_read_b64_tr_b16 {vr(base,2)}, v{reg} offset:{off+ct*64}")
            a(f"ds_read_b64_tr_b16 {vr(base+2,2)}, v{reg} offset:{off+ct*64+768}")
    waits = [26, 20, 8, 0]
    for c in range(4):
        a(f"s_waitcnt vmcnt({waits[c]})")
        if c == 0: stamp(a)
        a("s_barrier")
        if c == 0: stamp(a)
        rd(8 * c)
        rd(8 * c + 1)
        for idx in range(8 * c, 8 * c + 8):
            last = 8 * c + 7
            if idx < last:
                a("s_waitcnt lgkmcnt(7)")
            else:
                a("s_waitcnt lgkmcnt(0)")
                if c + 2 < 4:
                    xload(c + 2)
            if idx + 2 <= last:
                rd(idx + 2)
            buf = idx % 3
            for ct in range(3):
                wf = WF + buf * 12 + ct * 4
                acc = vr(ACC + 16 * ct, 16)
                a(f"v_mfma_f32_32x32x16_bf16 {acc}, {vr(wf,4)}, {vr(XF+4*buf,4)}, {acc}")
    a.nop(16)
    stamp(a)
    a(f"v_lshlrev_b32 v{t0}, 15, v{H2}")
    a(f"v_lshl_add_u32 v{t0}, v{TOK}, 4, v{t0}")
    a(f"v_mov_b32 v{t1}, 0")
    a("s_mul_i32 s28, s11, 3")
    a("s_lshr_b32 s35, s13, 3")
    for ct in range(3):
        src0 = ACC + 16 * ct
        a(f"s_add_u32 s29, s28, {ct}")
        a("s_lshr_b32 s30, s29, 4")
        a("s_and_b32 s31, s29, 15")
        a(f"s_mov_b32 s32, {hexf(QSCALE)}")
        a("s_cmp_eq_u32 s30, 0")
        a("s_cselect_b32 s32, s32, 1.0")
        for r in range(16):
            a(f"v_mul_f32 v{src0+r}, s32, v{src0+r}")
        lblNK = a.newlabel("qkv_nok")
        a("s_cmp_lg_u32 s30, 1")
        a(f"s_cbranch_scc1 {lblNK}")
        a("s_lshl_b32 s33, s31, 9")
        a("s_add_u32 s33, s33, s35")
        a(f"s_add_u32 s33, s33, {WS_KN}")
        for hl in range(2):
            src = src0 + 8 * hl
            q = WF + 2 * hl
            a(f"v_mul_f32 v{q}, v{src}, v{src}")
            for i in range(1, 8):
                a(f"v_fmac_f32 v{q}, v{src+i}, v{src+i}")
            a(f"v_mov_b32 v{q+1}, v{q}")
            a("s_nop 1")
            a(f"v_permlane32_swap_b32 v{q}, v{q+1}")
            a("s_nop 1")
            a(f"v_add_f32 v{q}, v{q}, v{q+1}")
            wave_max(a, q)
        a("s_mov_b32 s36, 0")
        a("s_mov_b32 s37, 0x80000000")
        a("s_mov_b64 exec, s[36:37]")
        for hl in range(2):
            a(f"buffer_store_dword v{WF+2*hl}, v{t1}, s[24:27], s33 offen offset:{hl*256}")
        a("s_mov_b64 exec, -1")
        a.label(lblNK)
        a("s_lshl_b32 s33, s30, 21")
        a("s_lshl_b32 s34, s31, 17")
        a("s_add_u32 s33, s33, s34")
        for hl in range(2):
            src = src0 + 8 * hl
            dst = EP + (ct * 2 + hl) * 4
            for i in range(4):
                a(f"v_cvt_pk_bf16_f32 v{dst+i}, v{src+2*i}, v{src+2*i+1}")
            a(f"buffer_store_dwordx4 {vr(dst,4)}, v{t0}, s[24:27], s33 offen" + os.environ.get("QST", " nt"))
            a("s_add_u32 s33, s33, 65536")
    stamp(a)
    a("s_barrier")
    kgen_tail(a, PR, TID, LANE, "s12", "s[24:27]")
    a("s_waitcnt vmcnt(0)") if STAMP["on"] else None
    stamp(a)
    a.label(end)
```

```python
from asmlib import *
import math
import numpy as np
from k_attn import wave_max

L2E = float(np.float32(math.log2(math.e)))
L2E_LO = float(np.float32(math.log2(math.e) - L2E))
LN2 = float(np.float32(math.log(2.0)))
I2P = float(np.float32(1.0 / (2 * math.pi)))
I2P_LO = float(np.float32(1.0 / (2 * math.pi) - I2P))

KD = 0
KM = 6144
UC = KM + 15360
RED = UC + 35328
UMX = 73216
OST = KM
SCR = 6144
S4D_LDS = 73728
S4D_VGPR = 128
ROWS = 528
UCS = 4416
CHS = 57 * ROWS

class RA:
    def __init__(self, start):
        self.n = start
        self.hi = start
    def __call__(self, k=1, align=1):
        while self.n % align: self.n += 1
        r = self.n
        self.n += k
        self.hi = max(self.hi, self.n)
        return r
    def mark(self): return self.n
    def reset(self, m): self.n = m

def gen_s4d(a, wg_base=0):
    end = a.newlabel("s4_end")
    a(f"s_cmp_ge_u32 s2, {256+wg_base}")
    a(f"s_cbranch_scc1 {end}")
    stamp_init(a)
    if wg_base:
        a(f"s_sub_u32 s2, s2, {wg_base}")
    a("s_load_dwordx4 s[4:7], s[0:1], 0")
    a("s_load_dwordx4 s[8:11], s[0:1], 16")
    a("s_load_dwordx4 s[12:15], s[0:1], 32")
    a("s_load_dwordx2 s[16:17], s[0:1], 48")
    a("s_load_dwordx2 s[18:19], s[0:1], 80")
    a("s_and_b32 s20, s2, 7")
    a("s_lshl_b32 s20, s20, 5")
    a("s_lshr_b32 s21, s2, 3")
    a("s_add_u32 s20, s20, s21")
    a("s_lshl_b32 s20, s20, 1")
    R = RA(0)
    TID = R(); LANE = R(); CH = R(); NM = R()
    t0 = R(); t1 = R(); t2 = R(); t3 = R()
    a(f"v_mov_b32 v{TID}, v0")
    a(f"v_and_b32 v{LANE}, 63, v{TID}")
    a(f"v_lshrrev_b32 v{t0}, 6, v{TID}")
    a(f"v_lshrrev_b32 v{CH}, 7, v{TID}")
    a(f"v_and_b32 v{NM}, 127, v{TID}")
    a("s_nop 0")
    a(f"v_readfirstlane_b32 s22, v{t0}")
    a("s_waitcnt lgkmcnt(0)")
    a("s_lshr_b32 s23, s22, 1")
    a("s_and_b32 s24, s22, 1")
    srd(a, 28, 4, 2048 * 512 * 2)
    srd(a, 32, 6, 512 * 128 * 2)
    srd(a, 36, 8, 512 * 128 * 2)
    srd(a, 40, 10, 512 * 128 * 2)
    srd(a, 44, 12, 512 * 128 * 2)
    srd(a, 48, 14, 1024)
    srd(a, 52, 16, 1024)
    srd(a, 56, 18, 2048 * 1024 * 2)
    a("s_add_u32 s25, s20, s23")
    a("s_lshl_b32 s26, s25, 8")
    DSK = R(); KSC = R(); UR = R(8)
    mk = R.mark()
    LA = R(); AI = R(); CR = R(); CI = R(); LDT = R(); CR2 = R(); CI2 = R()
    a(f"v_lshlrev_b32 v{t0}, 1, v{NM}")
    a(f"v_xor_b32 v{t2}, 128, v{t0}")
    a(f"buffer_load_ushort v{LA}, v{t0}, s[32:35], s26 offen")
    a(f"buffer_load_ushort v{AI}, v{t0}, s[36:39], s26 offen")
    a(f"buffer_load_ushort v{CR}, v{t0}, s[40:43], s26 offen")
    a(f"buffer_load_ushort v{CI}, v{t0}, s[44:47], s26 offen")
    a(f"buffer_load_ushort v{CR2}, v{t2}, s[40:43], s26 offen")
    a(f"buffer_load_ushort v{CI2}, v{t2}, s[44:47], s26 offen")
    a("s_lshl_b32 s26, s25, 1")
    a(f"v_mov_b32 v{t1}, 0")
    a(f"buffer_load_ushort v{LDT}, v{t1}, s[48:51], s26 offen")
    a(f"buffer_load_ushort v{DSK}, v{t1}, s[52:55], s26 offen")
    a(f"v_lshlrev_b32 v{t2}, 10, v{TID}")
    a("s_lshl_b32 s26, s20, 1")
    for k in range(8):
        a(f"buffer_load_dword v{UR+k}, v{t2}, s[28:31], s26 offen")
        if k < 7:
            a("s_add_u32 s26, s26, 262144")
    a(f"s_mov_b32 s60, {hexf(L2E)}")
    a(f"s_mov_b32 s61, {hexf(L2E_LO)}")
    a(f"s_mov_b32 s62, {hexf(LN2)}")
    a(f"s_mov_b32 s63, {hexf(I2P)}")
    a(f"s_mov_b32 s64, {hexf(I2P_LO)}")
    a("s_mov_b32 s65, 0xffff0000")
    a("s_waitcnt vmcnt(8)")
    for r in (LA, AI, CR, CI, LDT, DSK, CR2, CI2):
        a(f"v_lshlrev_b32 v{r}, 16, v{r}")
    def exp_bf16(x):
        a(f"v_mul_f32 v{t0}, s60, v{x}")
        a(f"v_fma_f32 v{t1}, v{x}, s60, -v{t0}")
        a(f"v_fmac_f32 v{t1}, s61, v{x}")
        a(f"v_exp_f32 v{t0}, v{t0}")
        a(f"v_mul_f32 v{t1}, s62, v{t1}")
        a(f"v_fma_f32 v{t0}, v{t0}, v{t1}, v{t0}")
        a(f"v_cvt_pk_bf16_f32 v{t0}, v{t0}, v{t0}")
        a(f"v_lshlrev_b32 v{x}, 16, v{t0}")
    exp_bf16(LDT)
    exp_bf16(LA)
    ER = R(); FIH = R(); FIL = R()
    a(f"v_mul_f32 v{ER}, v{LA}, v{LDT}")
    a(f"v_mul_f32 v{ER}, -1.0, v{ER}")
    a(f"v_mul_f32 v{ER}, s60, v{ER}")
    a(f"v_mul_f32 v{AI}, v{AI}, v{LDT}")
    a(f"v_mul_f32 v{FIH}, s63, v{AI}")
    a(f"v_fma_f32 v{FIL}, v{AI}, s63, -v{FIH}")
    a(f"v_fmac_f32 v{FIL}, s64, v{AI}")
    a(f"v_max3_f32 v{t0}, abs(v{CR}), abs(v{CI}), abs(v{CR2})")
    a(f"v_max_f32 v{t0}, v{t0}, abs(v{CI2})")
    wave_max(a, t0)
    a(f"v_readlane_b32 s66, v{t0}, 63")
    a("s_nop 3")
    a(f"v_mov_b32 v{t0}, s66")
    a(f"v_frexp_exp_i32_f32 v{t1}, v{t0}")
    a(f"v_sub_u32 v{t2}, 0, v{t1}")
    a(f"v_ldexp_f32 v{CR}, v{CR}, v{t2}")
    a(f"v_ldexp_f32 v{CI}, v{CI}, v{t2}")
    a(f"v_sub_f32 v{CI}, 0, v{CI}")
    a(f"v_add_u32 v{t1}, 8, v{t1}")
    a(f"v_ldexp_f32 v{KSC}, v{LDT}, v{t1}")
    def pw(t, re, im, conj=False):
        a(f"s_mov_b32 s66, {hexf(float(t))}")
        a(f"v_mul_f32 v{t0}, s66, v{ER}")
        a(f"v_exp_f32 v{t0}, v{t0}")
        a(f"v_mul_f32 v{t1}, s66, v{FIH}")
        a(f"v_fract_f32 v{t1}, v{t1}")
        a(f"v_fmac_f32 v{t1}, s66, v{FIL}")
        a(f"v_cos_f32 v{t2}, v{t1}")
        a(f"v_sin_f32 v{t3}, v{t1}")
        a("s_nop 0")
        a(f"v_mul_f32 v{re}, v{t0}, v{t2}")
        if conj:
            a(f"v_mul_f32 v{im}, -v{t0}, v{t3}")
        else:
            a(f"v_mul_f32 v{im}, v{t0}, v{t3}")
    def cmul(d, x, w, t):
        a(f"v_pk_mul_f32 {vr(t,2)}, {vr(x,2)}, {vr(w,2)} op_sel:[1,1] op_sel_hi:[1,0] neg_lo:[0,1]")
        a(f"v_pk_fma_f32 {vr(d,2)}, {vr(x,2)}, {vr(w,2)}, {vr(t,2)} op_sel_hi:[0,1,1]")
    WFp = R(2, 2); WGp = R(2, 2); XF_ = R(2, 2); XG_ = R(2, 2); TF = R(2, 2); TG = R(2, 2); CP = R(2, 2)
    HF = R(); HG = R()
    SW = R(); SRD_ = R(); KDW = R()
    a(f"v_mov_b32 v{CP}, v{CR}")
    a(f"v_mov_b32 v{CP+1}, v{CI}")
    a(f"v_mul_u32_u24 v{SW}, {CHS}, v{CH}")
    a(f"v_lshl_add_u32 v{SW}, v{NM}, 2, v{SW}")
    a(f"v_add_u32 v{SW}, {SCR}, v{SW}")
    a(f"v_and_b32 v{t0}, 15, v{LANE}")
    a(f"v_mul_u32_u24 v{SRD_}, {ROWS}, v{t0}")
    a(f"v_lshrrev_b32 v{t1}, 4, v{LANE}")
    a(f"v_lshl_add_u32 v{SRD_}, v{t1}, 4, v{SRD_}")
    a(f"s_mul_i32 s26, s23, {CHS}")
    a(f"s_mul_i32 s27, s24, {16*ROWS}")
    a("s_add_u32 s26, s26, s27")
    a(f"s_add_u32 s26, s26, {SCR}")
    a(f"v_add_u32 v{SRD_}, s26, v{SRD_}")
    a(f"v_lshlrev_b32 v{KDW}, 8, v{t1}")
    a(f"v_lshl_add_u32 v{KDW}, v{t0}, 2, v{KDW}")
    a("s_mul_i32 s26, s23, 3072")
    a(f"v_add_u32 v{KDW}, s26, v{KDW}")
    FR = R(16, 4); DACC = R(4, 4)
    stamp(a)
    for rnd in range(2):
        for sl in range(2):
            s = 2 * rnd + sl
            nG = [16, 8, 8, 9][s]
            pw(2 ** s, WFp, WFp + 1)
            if s > 0:
                pw(128 * 2 ** s, WGp, WGp + 1, conj=True)
                cmul(XG_, CP, WGp, TG)
            else:
                a(f"v_mov_b32 v{XG_}, v{CR}")
                a(f"v_mov_b32 v{XG_+1}, v{CI}")
            pw(16 * 2 ** s, WGp, WGp + 1, conj=True)
            a(f"v_mov_b32 v{XF_}, 1.0")
            a(f"v_mov_b32 v{XF_+1}, 0")
            for r in range(16):
                a(f"v_cvt_pk_f16_f32 v{HF}, v{XF_}, v{XF_+1}")
                if r < nG:
                    a(f"v_cvt_pk_f16_f32 v{HG}, v{XG_}, v{XG_+1}")
                if r < 15:
                    a(f"v_pk_mul_f32 {vr(TF,2)}, {vr(XF_,2)}, {vr(WFp,2)} op_sel:[1,1] op_sel_hi:[1,0] neg_lo:[0,1]")
                if r < nG - 1:
                    a(f"v_pk_mul_f32 {vr(TG,2)}, {vr(XG_,2)}, {vr(WGp,2)} op_sel:[1,1] op_sel_hi:[1,0] neg_lo:[0,1]")
                a(f"ds_write_b32 v{SW}, v{HF} offset:{(16*sl+r)*ROWS}")
                if r < nG:
                    a(f"ds_write_b32 v{SW}, v{HG} offset:{(32+16*sl+r)*ROWS}")
                if r < 15:
                    a(f"v_pk_fma_f32 {vr(XF_,2)}, {vr(XF_,2)}, {vr(WFp,2)}, {vr(TF,2)} op_sel_hi:[0,1,1]")
                if r < nG - 1:
                    a(f"v_pk_fma_f32 {vr(XG_,2)}, {vr(XG_,2)}, {vr(WGp,2)}, {vr(TG,2)} op_sel_hi:[0,1,1]")
        a("s_waitcnt lgkmcnt(0)")
        a("s_barrier")
        for r in range(4):
            a(f"v_mov_b32 v{DACC+r}, 0")
        d = vr(DACC, 4)
        for kk in range(2):
            for ks in range(4):
                k8 = 4 * kk + ks
                a(f"ds_read_b128 {vr(FR+4*(ks&1),4)}, v{SRD_} offset:{32*ROWS + k8*64}")
                a(f"ds_read_b128 {vr(FR+8+4*(ks&1),4)}, v{SRD_} offset:{k8*64}")
                if ks & 1:
                    a("s_waitcnt lgkmcnt(0)")
                    a(f"v_mfma_f32_16x16x32_f16 {d}, {vr(FR,4)}, {vr(FR+8,4)}, {d}")
                    a(f"v_mfma_f32_16x16x32_f16 {d}, {vr(FR+4,4)}, {vr(FR+12,4)}, {d}")
        a.nop(10)
        a(f"s_lshl_b32 s26, s24, 9")
        a(f"s_add_u32 s26, s26, {(256*rnd+128)*4}")
        if rnd == 0:
            a("s_cmp_eq_u32 s24, 0")
            a("s_cselect_b32 s26, 0, s26")
        a(f"v_add_u32 v{t0}, s26, v{KDW}")
        if rnd == 0:
            pass
        for r in range(4):
            a(f"ds_write_b32 v{t0}, v{DACC+r} offset:{16*r*4}")
        a("s_waitcnt lgkmcnt(0)")
        a("s_barrier")
        if rnd == 1:
            lbl = a.newlabel("s4_rw")
            a("s_cmp_eq_u32 s24, 0")
            a(f"s_cbranch_scc1 {lbl}")
            for r in range(4):
                a(f"ds_write_b32 v{t0}, v{DACC+r} offset:{16*r*4}")
            a.label(lbl)
    R.reset(mk)
    stamp(a)
    M = [R(), R()]
    a("s_waitcnt vmcnt(0)")
    for c in range(2):
        for k in range(8):
            if c == 0:
                a(f"v_lshlrev_b32 v{t0}, 16, v{UR+k}")
            else:
                a(f"v_and_b32 v{t0}, s65, v{UR+k}")
            if k == 0:
                a(f"v_and_b32 v{M[c]}, 0x7fffffff, v{t0}")
            else:
                a(f"v_max_f32 v{M[c]}, v{M[c]}, abs(v{t0})")
        wave_max(a, M[c])
    a("s_lshl_b32 s26, s22, 3")
    a(f"s_add_u32 s26, s26, {UMX}")
    a(f"v_mov_b32 v{t0}, s26")
    a("s_mov_b32 s68, 0")
    a("s_mov_b32 s69, 0x80000000")
    a("s_mov_b64 exec, s[68:69]")
    a(f"ds_write_b64 v{t0}, {vr(M[0],2)}")
    a("s_mov_b64 exec, -1")
    Z = R(4, 4)
    for r in range(4):
        a(f"v_mov_b32 v{Z+r}, 0")
    a(f"v_lshlrev_b32 v{t0}, 4, v{TID}")
    a(f"v_add_u32 v{t1}, {UC}, v{t0}")
    for k in range(9):
        a(f"ds_write_b128 v{t1}, {vr(Z,4)} offset:{k*4096}")
    a(f"v_cmp_gt_u32 vcc, 155, v{TID}")
    a("s_and_saveexec_b64 s[68:69], vcc")
    for c in range(2):
        a(f"ds_write_b128 v{t0}, {vr(Z,4)} offset:{KM + c*7680}")
    a("s_mov_b64 exec, s[68:69]")
    a("s_waitcnt lgkmcnt(0)")
    a("s_barrier")
    FJ = R(); IDX = R(16); ALT = R()
    a("s_mul_i32 s26, s23, 3072")
    a(f"v_lshlrev_b32 v{t0}, 4, v{NM}")
    a(f"v_cvt_f32_u32 v{FJ}, v{t0}")
    a(f"v_lshlrev_b32 v{ALT}, 6, v{NM}")
    a(f"v_add_u32 v{ALT}, s26, v{ALT}")
    a(f"v_cmp_gt_u32 vcc, 8, v{NM}")
    a(f"s_sub_u32 s26, s26, {17024*4}")
    for p in range(8):
        e = 2 * p
        a(f"v_add_f32 v{t0}, {hexf(float(e))}, v{FJ}")
        a(f"v_add_f32 v{t1}, {hexf(float(e+1))}, v{FJ}")
        a(f"v_cvt_pk_bf16_f32 v{t0}, v{t0}, v{t1}")
        a(f"s_sub_u32 s27, s26, {4*e}")
        a(f"v_and_b32 v{t1}, 0xffff, v{t0}")
        a(f"v_lshl_add_u32 v{t1}, v{t1}, 2, s27")
        a(f"v_cndmask_b32 v{t1}, v{t1}, v{ALT}, vcc")
        a(f"ds_read_b32 v{IDX+e}, v{t1} offset:{4*e}")
        a(f"s_sub_u32 s27, s26, {4*(e+1)}")
        a(f"v_lshrrev_b32 v{t0}, 16, v{t0}")
        a(f"v_lshl_add_u32 v{t0}, v{t0}, 2, s27")
        a(f"v_cndmask_b32 v{t0}, v{t0}, v{ALT}, vcc")
        a(f"ds_read_b32 v{IDX+e+1}, v{t0} offset:{4*(e+1)}")
    UM = R(8, 4)
    a(f"v_mov_b32 v{t0}, {UMX}")
    a(f"ds_read_b128 {vr(UM,4)}, v{t0}")
    a(f"ds_read_b128 {vr(UM+4,4)}, v{t0} offset:16")
    KW = R()
    a(f"v_lshrrev_b32 v{t0}, 1, v{NM}")
    a(f"v_mul_u32_u24 v{KW}, 80, v{t0}")
    a(f"v_and_b32 v{t0}, 1, v{NM}")
    a(f"v_lshl_add_u32 v{KW}, v{t0}, 5, v{KW}")
    a(f"v_mul_u32_u24 v{t0}, 7680, v{CH}")
    a(f"v_add_u32 v{KW}, v{KW}, v{t0}")
    a(f"v_add_u32 v{KW}, {KM + 31*80}, v{KW}")
    HP = R(8, 4)
    a(f"s_mov_b32 s66, {hexf(2.0**-7)}")
    a("s_waitcnt lgkmcnt(0)")
    for p in range(8):
        a(f"v_mul_f32 v{IDX+2*p}, s66, v{IDX+2*p}")
        a(f"v_mul_f32 v{IDX+2*p+1}, s66, v{IDX+2*p+1}")
        a(f"v_cvt_pk_f16_f32 v{HP+p}, v{IDX+2*p}, v{IDX+2*p+1}")
    a(f"ds_write_b128 v{KW}, {vr(HP,4)}")
    a(f"ds_write_b128 v{KW}, {vr(HP+4,4)} offset:16")
    EU = [R(), R()]
    for c in range(2):
        a(f"v_max3_f32 v{t0}, v{UM+c}, v{UM+2+c}, v{UM+4+c}")
        a(f"v_max_f32 v{t0}, v{t0}, v{UM+6+c}")
        a(f"v_frexp_exp_i32_f32 v{t0}, v{t0}")
        a(f"v_sub_u32 v{EU[c]}, 15, v{t0}")
    a(f"v_cmp_eq_u32 vcc, 0, v{CH}")
    a("s_nop 1")
    a(f"v_cndmask_b32 v{t0}, v{EU[1]}, v{EU[0]}, vcc")
    a(f"v_sub_u32 v{t0}, 0, v{t0}")
    a(f"v_ldexp_f32 v{KSC}, v{KSC}, v{t0}")
    NEU = R()
    a(f"v_mov_b32 v{NEU}, v{t0}")
    stamp(a)
    UW = R()
    a(f"v_lshlrev_b32 v{t0}, 1, v{TID}")
    a(f"v_sub_u32 v{UW}, {UC + 2*2047 - 512*7}, v{t0}")
    for k in range(8):
        a(f"v_lshlrev_b32 v{t2}, 16, v{UR+k}")
        a(f"v_and_b32 v{t3}, s65, v{UR+k}")
        a(f"v_ldexp_f32 v{t2}, v{t2}, v{EU[0]}")
        a(f"v_ldexp_f32 v{t3}, v{t3}, v{EU[1]}")
        a(f"v_cvt_pk_f16_f32 v{t2}, v{t2}, v{t3}")
        for phi in range(4):
            off = phi * (UCS - 2) + 512 * (7 - k)
            need_mask = (k == 7 and phi > 0)
            if need_mask:
                a(f"v_cmp_gt_u32 vcc, {256-phi}, v{TID}")
                a("s_and_saveexec_b64 s[68:69], vcc")
            a(f"ds_write_b16 v{UW}, v{t2} offset:{off}")
            a(f"ds_write_b16_d16_hi v{UW}, v{t2} offset:{off+17664}")
            if need_mask:
                a("s_mov_b64 exec, s[68:69]")
    keepNEU = UR
    a(f"v_mov_b32 v{keepNEU}, v{NEU}")
    NEU = keepNEU
    R.reset(mk)
    a("s_waitcnt lgkmcnt(0)")
    a("s_barrier")
    stamp(a)
    A31 = R(); H2 = R(); VB = R(); VA = R()
    a(f"v_and_b32 v{A31}, 31, v{LANE}")
    a(f"v_lshrrev_b32 v{H2}, 5, v{LANE}")
    a(f"v_mul_u32_u24 v{VB}, 80, v{A31}")
    a(f"v_lshl_add_u32 v{VB}, v{H2}, 4, v{VB}")
    a("s_mul_i32 s26, s23, 7680")
    a(f"s_add_u32 s26, s26, {KM + 31*80}")
    a(f"v_add_u32 v{VB}, s26, v{VB}")
    a(f"v_and_b32 v{t0}, 3, v{A31}")
    a(f"v_sub_u32 v{t0}, 3, v{t0}")
    a(f"v_mul_u32_u24 v{VA}, {UCS}, v{t0}")
    a(f"v_lshrrev_b32 v{t0}, 2, v{A31}")
    a(f"v_lshlrev_b32 v{t0}, 3, v{t0}")
    a(f"v_sub_u32 v{VA}, v{VA}, v{t0}")
    a(f"v_lshl_add_u32 v{VA}, v{H2}, 4, v{VA}")
    a("s_mul_i32 s26, s23, 17664")
    a(f"s_add_u32 s26, s26, {UC + 2*2044}")
    a(f"v_add_u32 v{VA}, s26, v{VA}")
    ACC0 = R(16, 4); ACC1 = R(16, 4)
    for r in range(16):
        a(f"v_mov_b32 v{ACC0+r}, 0")
        a(f"v_mov_b32 v{ACC1+r}, 0")
    BF = [R(8, 4), R(8, 4)]
    AF = [R(16, 4), R(16, 4)]
    VBc = R(); VAc = R()
    c1 = vr(ACC1, 16); c0 = vr(ACC0, 16)
    def conv_range(d_hi, d_lo, two):
        n = d_hi - d_lo + 1
        assert n % 2 == 0
        nl = 2 + (8 if two else 4)
        a(f"v_add_u32 v{VBc}, {((d_hi-1)*80) & 0xffffffff}, v{VB}")
        a(f"v_add_u32 v{VAc}, {(-64*(32-d_hi+1)) & 0xffffffff}, v{VA}")
        def rd(buf, first):
            bo = 80 if first else 0
            ao = 64 if first else 0
            a(f"ds_read_b128 {vr(BF[buf],4)}, v{VBc} offset:{bo}")
            a(f"ds_read_b128 {vr(BF[buf]+4,4)}, v{VBc} offset:{bo+32}")
            for h in range(2):
                a(f"ds_read_b64 {vr(AF[buf]+4*h,2)}, v{VAc} offset:{ao+32*h}")
                a(f"ds_read_b64 {vr(AF[buf]+4*h+2,2)}, v{VAc} offset:{ao+32*h+8}")
            if two:
                for h in range(2):
                    a(f"ds_read_b64 {vr(AF[buf]+8+4*h,2)}, v{VAc} offset:{2048+ao+32*h}")
                    a(f"ds_read_b64 {vr(AF[buf]+8+4*h+2,2)}, v{VAc} offset:{2048+ao+32*h+8}")
        def mm(buf):
            for h in range(2):
                a(f"v_mfma_f32_32x32x16_f16 {c1}, {vr(AF[buf]+4*h,4)}, {vr(BF[buf]+4*h,4)}, {c1}")
                if two:
                    a(f"v_mfma_f32_32x32x16_f16 {c0}, {vr(AF[buf]+8+4*h,4)}, {vr(BF[buf]+4*h,4)}, {c0}")
        rd(0, True)
        a(f"s_mov_b32 s67, {n//2}")
        lp = a.newlabel("s4_conv")
        a.label(lp)
        rd(1, False)
        a(f"v_subrev_u32 v{VBc}, 160, v{VBc}")
        a(f"v_subrev_u32 v{VAc}, 128, v{VAc}")
        a(f"s_waitcnt lgkmcnt({nl})")
        mm(0)
        rd(0, True)
        a(f"s_waitcnt lgkmcnt({nl})")
        mm(1)
        a("s_sub_u32 s67, s67, 1")
        a("s_cmp_lg_u32 s67, 0")
        a(f"s_cbranch_scc1 {lp}")
        a("s_waitcnt lgkmcnt(0)")
    lblB = a.newlabel("s4_partB"); lblJ = a.newlabel("s4_join")
    a("s_cmp_eq_u32 s24, 1")
    a(f"s_cbranch_scc1 {lblB}")
    conv_range(32, 1, False)
    conv_range(0, -7, True)
    a(f"s_branch {lblJ}")
    a.label(lblB)
    conv_range(-8, -31, True)
    a.label(lblJ)
    a.nop(16)
    stamp(a)
    RW = R()
    a(f"v_lshlrev_b32 v{RW}, 2, v{LANE}")
    a("s_lshl_b32 s26, s22, 12")
    a(f"s_add_u32 s26, s26, {RED}")
    a(f"v_add_u32 v{t2}, s26, v{RW}")
    a("s_xor_b32 s27, s22, 1")
    a("s_lshl_b32 s27, s27, 12")
    a(f"s_add_u32 s27, s27, {RED}")
    a(f"v_add_u32 v{t3}, s27, v{RW}")
    lblB2 = a.newlabel("s4_xB"); lblJ2 = a.newlabel("s4_xJ")
    a("s_cmp_eq_u32 s24, 1")
    a(f"s_cbranch_scc1 {lblB2}")
    for r in range(16):
        a(f"ds_write_b32 v{t2}, v{ACC0+r} offset:{r*256}")
    a(f"s_branch {lblJ2}")
    a.label(lblB2)
    for r in range(16):
        a(f"ds_write_b32 v{t2}, v{ACC1+r} offset:{r*256}")
    for r in range(16):
        a(f"v_mov_b32 v{ACC1+r}, v{ACC0+r}")
    a.label(lblJ2)
    a("s_waitcnt lgkmcnt(0)")
    a("s_barrier")
    for r in range(16):
        a(f"ds_read_b32 v{ACC0+r}, v{t3} offset:{r*256}")
    LB = R()
    a("s_xor_b32 s26, s24, 1")
    a("s_lshl_b32 s26, s26, 10")
    a(f"v_lshlrev_b32 v{LB}, 5, v{A31}")
    a(f"v_lshl_add_u32 v{LB}, v{H2}, 2, v{LB}")
    a(f"v_add_u32 v{LB}, s26, v{LB}")
    a("s_mul_i32 s26, s23, 17664")
    a(f"s_add_u32 s26, s26, {UC + 2*2044 - 48}")
    a(f"v_lshlrev_b32 v{t0}, 1, v{LB}")
    a(f"v_sub_u32 v{t0}, s26, v{t0}")
    UV = AF[0]
    for i in range(4):
        a(f"ds_read_b64 {vr(UV+2*i,2)}, v{t0} offset:{48-16*i}")
    a(f"v_lshlrev_b32 v{t2}, 1, v{LB}")
    a("s_lshl_b32 s26, s23, 12")
    a(f"s_add_u32 s26, s26, {OST}")
    a(f"v_add_u32 v{t2}, s26, v{t2}")
    a("s_waitcnt lgkmcnt(0)")
    UF = AF[1]; OP = BF[0]
    for i in range(4):
        a(f"v_cvt_f32_f16 v{UF+3}, v{UV+2*i}")
        a(f"v_lshrrev_b32 v{t0}, 16, v{UV+2*i}")
        a(f"v_cvt_f32_f16 v{UF+2}, v{t0}")
        a(f"v_cvt_f32_f16 v{UF+1}, v{UV+2*i+1}")
        a(f"v_lshrrev_b32 v{t0}, 16, v{UV+2*i+1}")
        a(f"v_cvt_f32_f16 v{UF+0}, v{t0}")
        for jj in range(4):
            r = 4 * i + jj
            a(f"v_add_f32 v{ACC1+r}, v{ACC1+r}, v{ACC0+r}")
            a(f"v_mul_f32 v{ACC1+r}, v{ACC1+r}, v{KSC}")
            a(f"v_ldexp_f32 v{UF+jj}, v{UF+jj}, v{NEU}")
            a(f"v_mul_f32 v{UF+jj}, v{UF+jj}, v{DSK}")
            a(f"v_cvt_pk_bf16_f32 v{t0}, v{ACC1+r}, v{UF+jj}")
            a(f"v_lshlrev_b32 v{t1}, 16, v{t0}")
            a(f"v_and_b32 v{t0}, s65, v{t0}")
            a(f"v_add_f32 v{UF+4+jj}, v{t0}, v{t1}")
        a(f"v_cvt_pk_bf16_f32 v{OP+2*i}, v{UF+4}, v{UF+5}")
        a(f"v_cvt_pk_bf16_f32 v{OP+2*i+1}, v{UF+6}, v{UF+7}")
        a(f"ds_write_b64 v{t2}, {vr(OP+2*i,2)} offset:{16*i}")
    a("s_waitcnt lgkmcnt(0)")
    a("s_barrier")
    a(f"v_lshlrev_b32 v{t0}, 1, v{TID}")
    a(f"v_add_u32 v{t0}, {OST}, v{t0}")
    O0 = ACC0; O1 = ACC0 + 8
    for k in range(8):
        a(f"ds_read_u16 v{O0+k}, v{t0} offset:{k*512}")
        a(f"ds_read_u16 v{O1+k}, v{t0} offset:{4096+k*512}")
    a(f"v_lshlrev_b32 v{t1}, 11, v{TID}")
    a("s_lshl_b32 s26, s20, 1")
    a("s_waitcnt lgkmcnt(0)")
    for k in range(8):
        a(f"v_lshl_or_b32 v{O0+k}, v{O1+k}, 16, v{O0+k}")
        a(f"buffer_store_dword v{O0+k}, v{t1}, s[56:59], s26 offen")
        if k < 7:
            a("s_add_u32 s26, s26, 524288")
    a("s_waitcnt vmcnt(0)") if STAMP["on"] else None
    stamp(a)
    a.label(end)
    assert R.hi <= S4D_VGPR, R.hi


def gen_conv(a, wg_base=0):
    from k_kgen import WS_KP, WS_KS, WS_ALL
    end = a.newlabel("s4_end")
    a(f"s_cmp_ge_u32 s2, {256+wg_base}")
    a(f"s_cbranch_scc1 {end}")
    stamp_init(a)
    if wg_base:
        a(f"s_sub_u32 s2, s2, {wg_base}")
    a("s_load_dwordx2 s[4:5], s[0:1], 0")
    a("s_load_dwordx2 s[6:7], s[0:1], 96")
    a("s_load_dwordx2 s[16:17], s[0:1], 48")
    a("s_load_dwordx2 s[18:19], s[0:1], 80")
    a("s_and_b32 s20, s2, 7")
    a("s_lshl_b32 s20, s20, 5")
    a("s_lshr_b32 s21, s2, 3")
    a("s_add_u32 s20, s20, s21")
    a("s_lshl_b32 s20, s20, 1")
    R = RA(0)
    TID = R(); LANE = R(); CH = R(); NM = R()
    t0 = R(); t1 = R(); t2 = R(); t3 = R()
    a(f"v_mov_b32 v{TID}, v0")
    a(f"v_and_b32 v{LANE}, 63, v{TID}")
    a(f"v_lshrrev_b32 v{t0}, 6, v{TID}")
    a(f"v_lshrrev_b32 v{CH}, 7, v{TID}")
    a(f"v_and_b32 v{NM}, 127, v{TID}")
    a("s_nop 0")
    a(f"v_readfirstlane_b32 s22, v{t0}")
    a("s_waitcnt lgkmcnt(0)")
    a("s_lshr_b32 s23, s22, 1")
    a("s_and_b32 s24, s22, 1")
    srd(a, 28, 4, 2048 * 512 * 2)
    srd(a, 32, 6, WS_ALL)
    srd(a, 52, 16, 1024)
    srd(a, 56, 18, 2048 * 1024 * 2)
    a("s_add_u32 s25, s20, s23")
    DSK = R(); KSC = R(); UR = R(8)
    mk = R.mark()
    KP = R(8, 4)
    a("s_lshl_b32 s26, s25, 1")
    a(f"v_mov_b32 v{t1}, 0")
    a(f"buffer_load_ushort v{DSK}, v{t1}, s[52:55], s26 offen")
    a("s_lshl_b32 s26, s25, 2")
    a(f"s_add_u32 s26, s26, {WS_KS}")
    a(f"buffer_load_dword v{KSC}, v{t1}, s[32:35], s26 offen")
    a("s_lshl_b32 s26, s20, 12")
    a(f"s_add_u32 s26, s26, {WS_KP}")
    a(f"v_lshlrev_b32 v{t0}, 5, v{TID}")
    a(f"buffer_load_dwordx4 {vr(KP,4)}, v{t0}, s[32:35], s26 offen")
    a(f"buffer_load_dwordx4 {vr(KP+4,4)}, v{t0}, s[32:35], s26 offen offset:16")
    a(f"v_lshlrev_b32 v{t2}, 10, v{TID}")
    a("s_lshl_b32 s26, s20, 1")
    for k in range(8):
        a(f"buffer_load_dword v{UR+k}, v{t2}, s[28:31], s26 offen")
        if k < 7:
            a("s_add_u32 s26, s26, 262144")
    a("s_mov_b32 s65, 0xffff0000")
    stamp(a)
    M = [R(), R()]
    a("s_waitcnt vmcnt(0)")
    a(f"v_lshlrev_b32 v{DSK}, 16, v{DSK}")
    for c in range(2):
        for k in range(8):
            if c == 0:
                a(f"v_lshlrev_b32 v{t0}, 16, v{UR+k}")
            else:
                a(f"v_and_b32 v{t0}, s65, v{UR+k}")
            if k == 0:
                a(f"v_and_b32 v{M[c]}, 0x7fffffff, v{t0}")
            else:
                a(f"v_max_f32 v{M[c]}, v{M[c]}, abs(v{t0})")
        wave_max(a, M[c])
    a("s_lshl_b32 s26, s22, 3")
    a(f"s_add_u32 s26, s26, {UMX}")
    a(f"v_mov_b32 v{t0}, s26")
    a("s_mov_b32 s68, 0")
    a("s_mov_b32 s69, 0x80000000")
    a("s_mov_b64 exec, s[68:69]")
    a(f"ds_write_b64 v{t0}, {vr(M[0],2)}")
    a("s_mov_b64 exec, -1")
    Z = R(4, 4)
    for r in range(4):
        a(f"v_mov_b32 v{Z+r}, 0")
    a(f"v_lshlrev_b32 v{t0}, 4, v{TID}")
    a(f"v_add_u32 v{t1}, {UC}, v{t0}")
    for k in range(9):
        a(f"ds_write_b128 v{t1}, {vr(Z,4)} offset:{k*4096}")
    a(f"v_cmp_gt_u32 vcc, 155, v{TID}")
    a("s_and_saveexec_b64 s[68:69], vcc")
    for c in range(2):
        a(f"ds_write_b128 v{t0}, {vr(Z,4)} offset:{KM + c*7680}")
    a("s_mov_b64 exec, s[68:69]")
    a("s_waitcnt lgkmcnt(0)")
    a("s_barrier")
    UM = R(8, 4)
    a(f"v_mov_b32 v{t0}, {UMX}")
    a(f"ds_read_b128 {vr(UM,4)}, v{t0}")
    a(f"ds_read_b128 {vr(UM+4,4)}, v{t0} offset:16")
    KW = R()
    a(f"v_lshrrev_b32 v{t0}, 1, v{NM}")
    a(f"v_mul_u32_u24 v{KW}, 80, v{t0}")
    a(f"v_and_b32 v{t0}, 1, v{NM}")
    a(f"v_lshl_add_u32 v{KW}, v{t0}, 5, v{KW}")
    a(f"v_mul_u32_u24 v{t0}, 7680, v{CH}")
    a(f"v_add_u32 v{KW}, v{KW}, v{t0}")
    a(f"v_add_u32 v{KW}, {KM + 31*80}, v{KW}")
    a(f"ds_write_b128 v{KW}, {vr(KP,4)}")
    a(f"ds_write_b128 v{KW}, {vr(KP+4,4)} offset:16")
    a("s_waitcnt lgkmcnt(2)")
    EU = [R(), R()]
    for c in range(2):
        a(f"v_max3_f32 v{t0}, v{UM+c}, v{UM+2+c}, v{UM+4+c}")
        a(f"v_max_f32 v{t0}, v{t0}, v{UM+6+c}")
        a(f"v_frexp_exp_i32_f32 v{t0}, v{t0}")
        a(f"v_sub_u32 v{EU[c]}, 15, v{t0}")
    a(f"v_cmp_eq_u32 vcc, 0, v{CH}")
    a("s_nop 1")
    a(f"v_cndmask_b32 v{t0}, v{EU[1]}, v{EU[0]}, vcc")
    a(f"v_sub_u32 v{t0}, 0, v{t0}")
    a(f"v_ldexp_f32 v{KSC}, v{KSC}, v{t0}")
    NEU = R()
    a(f"v_mov_b32 v{NEU}, v{t0}")
    stamp(a)
    UW = R()
    a(f"v_lshlrev_b32 v{t0}, 1, v{TID}")
    a(f"v_sub_u32 v{UW}, {UC + 2*2047 - 512*7}, v{t0}")
    for k in range(8):
        a(f"v_lshlrev_b32 v{t2}, 16, v{UR+k}")
        a(f"v_and_b32 v{t3}, s65, v{UR+k}")
        a(f"v_ldexp_f32 v{t2}, v{t2}, v{EU[0]}")
        a(f"v_ldexp_f32 v{t3}, v{t3}, v{EU[1]}")
        a(f"v_cvt_pk_f16_f32 v{t2}, v{t2}, v{t3}")
        for phi in range(4):
            off = phi * (UCS - 2) + 512 * (7 - k)
            need_mask = (k == 7 and phi > 0)
            if need_mask:
                a(f"v_cmp_gt_u32 vcc, {256-phi}, v{TID}")
                a("s_and_saveexec_b64 s[68:69], vcc")
            a(f"ds_write_b16 v{UW}, v{t2} offset:{off}")
            a(f"ds_write_b16_d16_hi v{UW}, v{t2} offset:{off+17664}")
            if need_mask:
                a("s_mov_b64 exec, s[68:69]")
    keepNEU = UR
    a(f"v_mov_b32 v{keepNEU}, v{NEU}")
    NEU = keepNEU
    R.reset(mk)
    a("s_waitcnt lgkmcnt(0)")
    a("s_barrier")
    stamp(a)
    A31 = R(); H2 = R(); VB = R(); VA = R()
    a(f"v_and_b32 v{A31}, 31, v{LANE}")
    a(f"v_lshrrev_b32 v{H2}, 5, v{LANE}")
    a(f"v_mul_u32_u24 v{VB}, 80, v{A31}")
    a(f"v_lshl_add_u32 v{VB}, v{H2}, 4, v{VB}")
    a("s_mul_i32 s26, s23, 7680")
    a(f"s_add_u32 s26, s26, {KM + 31*80}")
    a(f"v_add_u32 v{VB}, s26, v{VB}")
    a(f"v_and_b32 v{t0}, 3, v{A31}")
    a(f"v_sub_u32 v{t0}, 3, v{t0}")
    a(f"v_mul_u32_u24 v{VA}, {UCS}, v{t0}")
    a(f"v_lshrrev_b32 v{t0}, 2, v{A31}")
    a(f"v_lshlrev_b32 v{t0}, 3, v{t0}")
    a(f"v_sub_u32 v{VA}, v{VA}, v{t0}")
    a(f"v_lshl_add_u32 v{VA}, v{H2}, 4, v{VA}")
    a("s_mul_i32 s26, s23, 17664")
    a(f"s_add_u32 s26, s26, {UC + 2*2044}")
    a(f"v_add_u32 v{VA}, s26, v{VA}")
    ACC0 = R(16, 4); ACC1 = R(16, 4)
    for r in range(16):
        a(f"v_mov_b32 v{ACC0+r}, 0")
        a(f"v_mov_b32 v{ACC1+r}, 0")
    BF = [R(8, 4), R(8, 4)]
    AF = [R(16, 4), R(16, 4)]
    VBc = R(); VAc = R()
    c1 = vr(ACC1, 16); c0 = vr(ACC0, 16)
    def conv_range(d_hi, d_lo, two):
        n = d_hi - d_lo + 1
        assert n % 2 == 0
        nl = 2 + (8 if two else 4)
        a(f"v_add_u32 v{VBc}, {((d_hi-1)*80) & 0xffffffff}, v{VB}")
        a(f"v_add_u32 v{VAc}, {(-64*(32-d_hi+1)) & 0xffffffff}, v{VA}")
        def rd(buf, first):
            bo = 80 if first else 0
            ao = 64 if first else 0
            a(f"ds_read_b128 {vr(BF[buf],4)}, v{VBc} offset:{bo}")
            a(f"ds_read_b128 {vr(BF[buf]+4,4)}, v{VBc} offset:{bo+32}")
            for h in range(2):
                a(f"ds_read_b64 {vr(AF[buf]+4*h,2)}, v{VAc} offset:{ao+32*h}")
                a(f"ds_read_b64 {vr(AF[buf]+4*h+2,2)}, v{VAc} offset:{ao+32*h+8}")
            if two:
                for h in range(2):
                    a(f"ds_read_b64 {vr(AF[buf]+8+4*h,2)}, v{VAc} offset:{2048+ao+32*h}")
                    a(f"ds_read_b64 {vr(AF[buf]+8+4*h+2,2)}, v{VAc} offset:{2048+ao+32*h+8}")
        def mm(buf):
            for h in range(2):
                a(f"v_mfma_f32_32x32x16_f16 {c1}, {vr(AF[buf]+4*h,4)}, {vr(BF[buf]+4*h,4)}, {c1}")
                if two:
                    a(f"v_mfma_f32_32x32x16_f16 {c0}, {vr(AF[buf]+8+4*h,4)}, {vr(BF[buf]+4*h,4)}, {c0}")
        rd(0, True)
        a(f"s_mov_b32 s67, {n//2}")
        lp = a.newlabel("s4_conv")
        a.label(lp)
        rd(1, False)
        a(f"v_subrev_u32 v{VBc}, 160, v{VBc}")
        a(f"v_subrev_u32 v{VAc}, 128, v{VAc}")
        a(f"s_waitcnt lgkmcnt({nl})")
        mm(0)
        rd(0, True)
        a(f"s_waitcnt lgkmcnt({nl})")
        mm(1)
        a("s_sub_u32 s67, s67, 1")
        a("s_cmp_lg_u32 s67, 0")
        a(f"s_cbranch_scc1 {lp}")
        a("s_waitcnt lgkmcnt(0)")
    lblB = a.newlabel("s4_partB"); lblJ = a.newlabel("s4_join")
    a("s_cmp_eq_u32 s24, 1")
    a(f"s_cbranch_scc1 {lblB}")
    conv_range(32, 1, False)
    conv_range(0, -7, True)
    a(f"s_branch {lblJ}")
    a.label(lblB)
    conv_range(-8, -31, True)
    a.label(lblJ)
    a.nop(16)
    stamp(a)
    RW = R()
    a(f"v_lshlrev_b32 v{RW}, 2, v{LANE}")
    a("s_lshl_b32 s26, s22, 12")
    a(f"s_add_u32 s26, s26, {RED}")
    a(f"v_add_u32 v{t2}, s26, v{RW}")
    a("s_xor_b32 s27, s22, 1")
    a("s_lshl_b32 s27, s27, 12")
    a(f"s_add_u32 s27, s27, {RED}")
    a(f"v_add_u32 v{t3}, s27, v{RW}")
    lblB2 = a.newlabel("s4_xB"); lblJ2 = a.newlabel("s4_xJ")
    a("s_cmp_eq_u32 s24, 1")
    a(f"s_cbranch_scc1 {lblB2}")
    for r in range(16):
        a(f"ds_write_b32 v{t2}, v{ACC0+r} offset:{r*256}")
    a(f"s_branch {lblJ2}")
    a.label(lblB2)
    for r in range(16):
        a(f"ds_write_b32 v{t2}, v{ACC1+r} offset:{r*256}")
    for r in range(16):
        a(f"v_mov_b32 v{ACC1+r}, v{ACC0+r}")
    a.label(lblJ2)
    a("s_waitcnt lgkmcnt(0)")
    a("s_barrier")
    for r in range(16):
        a(f"ds_read_b32 v{ACC0+r}, v{t3} offset:{r*256}")
    LB = R()
    a("s_xor_b32 s26, s24, 1")
    a("s_lshl_b32 s26, s26, 10")
    a(f"v_lshlrev_b32 v{LB}, 5, v{A31}")
    a(f"v_lshl_add_u32 v{LB}, v{H2}, 2, v{LB}")
    a(f"v_add_u32 v{LB}, s26, v{LB}")
    a("s_mul_i32 s26, s23, 17664")
    a(f"s_add_u32 s26, s26, {UC + 2*2044 - 48}")
    a(f"v_lshlrev_b32 v{t0}, 1, v{LB}")
    a(f"v_sub_u32 v{t0}, s26, v{t0}")
    UV = AF[0]
    for i in range(4):
        a(f"ds_read_b64 {vr(UV+2*i,2)}, v{t0} offset:{48-16*i}")
    a(f"v_lshlrev_b32 v{t2}, 1, v{LB}")
    a("s_lshl_b32 s26, s23, 12")
    a(f"s_add_u32 s26, s26, {OST}")
    a(f"v_add_u32 v{t2}, s26, v{t2}")
    a("s_waitcnt lgkmcnt(0)")
    UF = AF[1]; OP = BF[0]
    for i in range(4):
        a(f"v_cvt_f32_f16 v{UF+3}, v{UV+2*i}")
        a(f"v_lshrrev_b32 v{t0}, 16, v{UV+2*i}")
        a(f"v_cvt_f32_f16 v{UF+2}, v{t0}")
        a(f"v_cvt_f32_f16 v{UF+1}, v{UV+2*i+1}")
        a(f"v_lshrrev_b32 v{t0}, 16, v{UV+2*i+1}")
        a(f"v_cvt_f32_f16 v{UF+0}, v{t0}")
        for jj in range(4):
            r = 4 * i + jj
            a(f"v_add_f32 v{ACC1+r}, v{ACC1+r}, v{ACC0+r}")
            a(f"v_mul_f32 v{ACC1+r}, v{ACC1+r}, v{KSC}")
            a(f"v_ldexp_f32 v{UF+jj}, v{UF+jj}, v{NEU}")
            a(f"v_mul_f32 v{UF+jj}, v{UF+jj}, v{DSK}")
            a(f"v_cvt_pk_bf16_f32 v{t0}, v{ACC1+r}, v{UF+jj}")
            a(f"v_lshlrev_b32 v{t1}, 16, v{t0}")
            a(f"v_and_b32 v{t0}, s65, v{t0}")
            a(f"v_add_f32 v{UF+4+jj}, v{t0}, v{t1}")
        a(f"v_cvt_pk_bf16_f32 v{OP+2*i}, v{UF+4}, v{UF+5}")
        a(f"v_cvt_pk_bf16_f32 v{OP+2*i+1}, v{UF+6}, v{UF+7}")
        a(f"ds_write_b64 v{t2}, {vr(OP+2*i,2)} offset:{16*i}")
    a("s_waitcnt lgkmcnt(0)")
    a("s_barrier")
    a(f"v_lshlrev_b32 v{t0}, 1, v{TID}")
    a(f"v_add_u32 v{t0}, {OST}, v{t0}")
    O0 = ACC0; O1 = ACC0 + 8
    for k in range(8):
        a(f"ds_read_u16 v{O0+k}, v{t0} offset:{k*512}")
        a(f"ds_read_u16 v{O1+k}, v{t0} offset:{4096+k*512}")
    a(f"v_lshlrev_b32 v{t1}, 11, v{TID}")
    a("s_lshl_b32 s26, s20, 1")
    a("s_waitcnt lgkmcnt(0)")
    for k in range(8):
        a(f"v_lshl_or_b32 v{O0+k}, v{O1+k}, 16, v{O0+k}")
        a(f"buffer_store_dword v{O0+k}, v{t1}, s[56:59], s26 offen")
        if k < 7:
            a("s_add_u32 s26, s26, 524288")
    a("s_waitcnt vmcnt(0)") if STAMP["on"] else None
    stamp(a)
    a.label(end)
    assert R.hi <= S4D_VGPR, R.hi
```

```python
import sys
from asmlib import *
from k_gemm import *
from k_attn import wave_max
from k_attn5 import *
from k_qkv5 import *
try:
    from k_s4d import *
    HAVE_S4D = True
except ImportError:
    HAVE_S4D = False

import os
FORCE_SLOW = bool(os.environ.get("FORCE_SLOW"))
NAME = "concat_heads__ssm_conv_s4d__softmax_full_mha__prompt"
hdr = open(f"cdna_kernels/{NAME}.s.ref").read().split("; Override launch geometry")[0]

def build(diag=False):
    STAMP["on"] = diag
    V = (lambda n: 256 if n > 128 else 128) if diag else (lambda n: n)
    a = Asm()
    launches = []
    descs = []
    a.raw('.amdgcn_target "amdgcn-amd-amdhsa--gfx950"')
    kernel_header(a, "qkv_kernel"); gen_qkv5(a); a("s_endpgm")
    launches.append(f"; @launch kernel=qkv_kernel grid=(256,1,1) block=(256,1,1) lds={QKV_LDS}")
    descs.append(kernel_desc("qkv_kernel", V(QKV_VGPR)))
    kernel_header(a, "attn_kernel")
    gen_attn(a, force_slow=FORCE_SLOW); a("s_endpgm")
    launches.append(f"; @launch kernel=attn_kernel grid=(256,1,1) block=({ATTN_BLOCK},1,1) lds={ATTN_LDS}")
    descs.append(kernel_desc("attn_kernel", 128))
    kernel_header(a, "fin_kernel")
    lbl = a.newlabel("fin_op")
    a("s_cmp_ge_u32 s2, 256")
    a(f"s_cbranch_scc1 {lbl}")
    gen_conv(a); a("s_endpgm")
    a.label(lbl)
    gen_oproj(a, wg_base=256); a("s_endpgm")
    launches.append(f"; @launch kernel=fin_kernel grid=(512,1,1) block=(256,1,1) lds={S4D_LDS}")
    descs.append(kernel_desc("fin_kernel", 256))
    return hdr + "\n".join(launches) + "\n" + a.text() + "".join(descs)

def build_sep(diag=False):
    STAMP["on"] = diag
    V = (lambda n: 256 if n > 128 else 128) if diag else (lambda n: n)
    a = Asm()
    launches = []
    descs = []
    a.raw('.amdgcn_target "amdgcn-amd-amdhsa--gfx950"')
    kernel_header(a, "qkv_kernel"); gen_qkv5(a); a("s_endpgm")
    launches.append(f"; @launch kernel=qkv_kernel grid=(256,1,1) block=(256,1,1) lds={QKV_LDS}")
    descs.append(kernel_desc("qkv_kernel", V(QKV_VGPR)))
    kernel_header(a, "s4d_kernel"); gen_s4d(a); a("s_endpgm")
    launches.append(f"; @launch kernel=s4d_kernel grid=(256,1,1) block=(256,1,1) lds={S4D_LDS}")
    descs.append(kernel_desc("s4d_kernel", V(S4D_VGPR)))
    kernel_header(a, "attn_kernel"); gen_attn(a, force_slow=FORCE_SLOW); a("s_endpgm")
    launches.append(f"; @launch kernel=attn_kernel grid=(256,1,1) block=({ATTN_BLOCK},1,1) lds={ATTN_LDS}")
    descs.append(kernel_desc("attn_kernel", V(ATTN_VGPR)))
    kernel_header(a, "fin_kernel")
    gen_oproj(a); a("s_endpgm")
    launches.append(f"; @launch kernel=fin_kernel grid=(256,1,1) block=(256,1,1) lds=65536")
    descs.append(kernel_desc("fin_kernel", 256))
    return hdr + "\n".join(launches) + "\n" + a.text() + "".join(descs)

if __name__ == "__main__":
    out = sys.argv[1] if len(sys.argv) > 1 else f"cdna_kernels/{NAME}.s"
    b = build_sep if os.environ.get("SEP") else build
    open(out, "w").write(b(diag=(len(sys.argv) > 2)))
    print("wrote", out)
```

```python
from asmlib import *
import os
from k_gemm import WS_Q, WS_K, WS_V, WS_O, WS_KN, WS_TOTAL, QSCALE, MB
from k_attn import wave_max
from k_kgen import kgen_prefetch, kgen_tail, WS_ALL

QKV_LDS = 163840
QKV_VGPR = 128
XB = 98304

def gen_qkv5(a, wg_base=0, kgen=True):
    end = a.newlabel("qkv_end")
    if wg_base:
        a(f"s_sub_u32 s2, s2, {wg_base}")
    a("s_cmp_ge_u32 s2, 256")
    a(f"s_cbranch_scc1 {end}")
    stamp_init(a)
    a("s_load_dwordx2 s[4:5], s[0:1], 56")
    a("s_load_dwordx2 s[6:7], s[0:1], 64")
    a("s_load_dwordx2 s[8:9], s[0:1], 96")
    a("s_and_b32 s13, s2, 3")
    a("s_lshl_b32 s13, s13, 2")
    a("s_bfe_u32 s10, s2, 0x20003")
    a("s_add_u32 s10, s10, s13")
    a("s_bfe_u32 s13, s2, 0x10002")
    a("s_lshl_b32 s13, s13, 3")
    a("s_lshr_b32 s11, s2, 5")
    a("s_add_u32 s11, s11, s13")
    ACC = 0; WF = 48; XF = 84; XAD = 96; XVO = 104
    TID, LANE, H2, TOK, VW, VW2, t0, t1, t2 = range(108, 117)
    EP = 52
    a(f"v_mov_b32 v{TID}, v0")
    a(f"v_and_b32 v{LANE}, 63, v{TID}")
    a(f"v_lshrrev_b32 v{t0}, 6, v{TID}")
    a("s_nop 0")
    a(f"v_readfirstlane_b32 s12, v{t0}")
    a("s_waitcnt lgkmcnt(0)")
    srd(a, 16, 4, 2 * MB)
    srd(a, 20, 6, 512 * 1536 * 2)
    srd(a, 24, 8, WS_ALL)
    PR = 117
    if kgen: kgen_prefetch(a, PR, TID)
    a("s_mul_i32 s14, s11, 192")
    a("s_lshl_b32 s13, s10, 7")
    a("s_lshl_b32 s15, s12, 5")
    a("s_add_u32 s13, s13, s15")
    a("s_lshl_b32 s15, s12, 10")
    a("s_lshl_b32 s38, s12, 13")
    a(f"s_add_u32 s38, s38, {XB}")
    a(f"v_lshrrev_b32 v{t0}, 4, v{LANE}")
    a(f"v_and_b32 v{t1}, 15, v{LANE}")
    for i in range(4):
        a(f"v_add_u32 v{t2}, {4*i}, v{t0}")
        a(f"v_xor_b32 v{XVO+i}, v{t1}, v{t2}")
        a(f"v_lshlrev_b32 v{XVO+i}, 4, v{XVO+i}")
        a(f"v_add_u32 v{t2}, s13, v{t2}")
        a(f"v_lshl_add_u32 v{XVO+i}, v{t2}, 10, v{XVO+i}")
    def wload(i):
        a(f"v_add_u32 v{t0}, {256*i}, v{TID}")
        a(f"v_mul_u32_u24 v{t1}, 43691, v{t0}")
        a(f"v_lshrrev_b32 v{t1}, 19, v{t1}")
        a(f"v_mul_u32_u24 v{t1}, 2880, v{t1}")
        a(f"s_add_u32 m0, s15, {4096*i}")
        a(f"v_lshl_add_u32 v{t1}, v{t0}, 4, v{t1}")
        a(f"buffer_load_dwordx4 v{t1}, s[20:23], s14 offen lds")
    def xload(c):
        for i in range(8):
            a(f"s_add_u32 m0, s38, {(c&1)*32768 + i*1024}")
            a(f"s_mov_b32 s39, {(i>>2)*16384 + c*256}")
            a(f"buffer_load_dwordx4 v{XVO+(i&3)}, s[16:19], s39 offen lds")
    def issueW(c):
        for i in range(6 * c, 6 * c + 6):
            wload(i)
    issueW(0); xload(0); issueW(1); xload(1); issueW(2); issueW(3)
    a(f"v_and_b32 v{t0}, 31, v{LANE}")
    a(f"v_lshrrev_b32 v{H2}, 5, v{LANE}")
    a(f"v_add_u32 v{TOK}, s13, v{t0}")
    a(f"v_and_b32 v{t1}, 15, v{t0}")
    a(f"v_lshlrev_b32 v{t2}, 1, v{H2}")
    a(f"v_xor_b32 v{t1}, v{t1}, v{t2}")
    a(f"v_lshlrev_b32 v{t0}, 8, v{t0}")
    a(f"v_add_u32 v{t0}, s38, v{t0}")
    for kcl in range(4):
        for st in range(2):
            a(f"v_xor_b32 v{t2}, {4*kcl|st}, v{t1}")
            a(f"v_lshl_add_u32 v{XAD+2*kcl+st}, v{t2}, 4, v{t0}")
    a(f"v_bfe_u32 v{t0}, v{LANE}, 2, 2")
    a(f"v_lshl_add_u32 v{VW}, v{H2}, 4, v{t0}")
    a(f"v_mul_u32_u24 v{VW}, 192, v{VW}")
    a(f"v_bfe_u32 v{t0}, v{LANE}, 4, 1")
    a(f"v_lshl_add_u32 v{VW}, v{t0}, 5, v{VW}")
    a(f"v_and_b32 v{t0}, 3, v{LANE}")
    a(f"v_lshl_add_u32 v{VW}, v{t0}, 3, v{VW}")
    a(f"v_add_u32 v{VW2}, 49152, v{VW}")
    for r in range(48):
        a(f"v_mov_b32 v{ACC+r}, 0")
    steps = [(kc, st) for kc in range(16) for st in range(2)]
    def rd(idx):
        kc, st = steps[idx]
        buf = idx % 3
        off = (32 * kc + 8 * st) * 192
        reg = VW
        if off >= 49152:
            off -= 49152; reg = VW2
        a(f"ds_read_b128 {vr(XF+4*buf,4)}, v{XAD+2*(kc&3)+st} offset:{((kc>>2)&1)*32768}")
        for ct in range(3):
            base = WF + buf * 12 + ct * 4
            a(f"ds_read_b64_tr_b16 {vr(base,2)}, v{reg} offset:{off+ct*64}")
            a(f"ds_read_b64_tr_b16 {vr(base+2,2)}, v{reg} offset:{off+ct*64+768}")
    waits = [26, 20, 8, 0]
    for c in range(4):
        a(f"s_waitcnt vmcnt({waits[c]})")
        if c == 0: stamp(a)
        a("s_barrier")
        if c == 0: stamp(a)
        rd(8 * c)
        rd(8 * c + 1)
        for idx in range(8 * c, 8 * c + 8):
            last = 8 * c + 7
            if idx < last:
                a("s_waitcnt lgkmcnt(7)")
            else:
                a("s_waitcnt lgkmcnt(0)")
                if c + 2 < 4:
                    xload(c + 2)
            if idx + 2 <= last:
                rd(idx + 2)
            buf = idx % 3
            for ct in range(3):
                wf = WF + buf * 12 + ct * 4
                acc = vr(ACC + 16 * ct, 16)
                a(f"v_mfma_f32_32x32x16_bf16 {acc}, {vr(wf,4)}, {vr(XF+4*buf,4)}, {acc}")
    a.nop(16)
    stamp(a)
    a(f"v_lshlrev_b32 v{t0}, 15, v{H2}")
    a(f"v_lshl_add_u32 v{t0}, v{TOK}, 4, v{t0}")
    a(f"v_mov_b32 v{t1}, 0")
    a("s_mul_i32 s28, s11, 3")
    a("s_lshr_b32 s35, s13, 3")
    for ct in range(3):
        src0 = ACC + 16 * ct
        a(f"s_add_u32 s29, s28, {ct}")
        a("s_lshr_b32 s30, s29, 4")
        a("s_and_b32 s31, s29, 15")
        a(f"s_mov_b32 s32, {hexf(QSCALE)}")
        a("s_cmp_eq_u32 s30, 0")
        a("s_cselect_b32 s32, s32, 1.0")
        for r in range(16):
            a(f"v_mul_f32 v{src0+r}, s32, v{src0+r}")
        lblNK = a.newlabel("qkv_nok")
        a("s_cmp_lg_u32 s30, 1")
        a(f"s_cbranch_scc1 {lblNK}")
        a("s_lshl_b32 s33, s31, 9")
        a("s_add_u32 s33, s33, s35")
        a(f"s_add_u32 s33, s33, {WS_KN}")
        for hl in range(2):
            src = src0 + 8 * hl
            q = WF + 2 * hl
            a(f"v_mul_f32 v{q}, v{src}, v{src}")
            for i in range(1, 8):
                a(f"v_fmac_f32 v{q}, v{src+i}, v{src+i}")
            a(f"v_mov_b32 v{q+1}, v{q}")
            a("s_nop 1")
            a(f"v_permlane32_swap_b32 v{q}, v{q+1}")
            a("s_nop 1")
            a(f"v_add_f32 v{q}, v{q}, v{q+1}")
            wave_max(a, q)
        a("s_mov_b32 s36, 0")
        a("s_mov_b32 s37, 0x80000000")
        a("s_mov_b64 exec, s[36:37]")
        for hl in range(2):
            a(f"buffer_store_dword v{WF+2*hl}, v{t1}, s[24:27], s33 offen offset:{hl*256}")
        a("s_mov_b64 exec, -1")
        a.label(lblNK)
        a("s_lshl_b32 s33, s30, 21")
        a("s_lshl_b32 s34, s31, 17")
        a("s_add_u32 s33, s33, s34")
        for hl in range(2):
            src = src0 + 8 * hl
            dst = EP + (ct * 2 + hl) * 4
            for i in range(4):
                a(f"v_cvt_pk_bf16_f32 v{dst+i}, v{src+2*i}, v{src+2*i+1}")
            a(f"buffer_store_dwordx4 {vr(dst,4)}, v{t0}, s[24:27], s33 offen" + os.environ.get("QST", " nt"))
            a("s_add_u32 s33, s33, 65536")
    stamp(a)
    if kgen:
        a("s_barrier")
        kgen_tail(a, PR, TID, LANE, "s12", "s[24:27]")
    a("s_waitcnt vmcnt(0)") if STAMP["on"] else None
    stamp(a)
    a.label(end)
```

```python
import sys
from asmlib import *
from k_gemm import *
from k_attn import wave_max
from k_attn5 import *
from k_qkv5 import *
try:
    from k_s4d import *
    HAVE_S4D = True
except ImportError:
    HAVE_S4D = False

import os
FORCE_SLOW = bool(os.environ.get("FORCE_SLOW"))
NAME = "concat_heads__ssm_conv_s4d__softmax_full_mha__prompt"
hdr = open(f"cdna_kernels/{NAME}.s.ref").read().split("; Override launch geometry")[0]

def build(diag=False):
    STAMP["on"] = diag
    ARR = os.environ.get("ARR", "C")
    V = (lambda n: 256 if n > 128 else 128) if diag else (lambda n: n)
    a = Asm()
    launches = []
    descs = []
    a.raw('.amdgcn_target "amdgcn-amd-amdhsa--gfx950"')
    kernel_header(a, "qkv_kernel"); gen_qkv5(a, kgen=(ARR in "AB")); a("s_endpgm")
    launches.append(f"; @launch kernel=qkv_kernel grid=(256,1,1) block=(256,1,1) lds={QKV_LDS}")
    descs.append(kernel_desc("qkv_kernel", V(QKV_VGPR)))
    kernel_header(a, "mid_kernel")
    if ARR in "BC":
        lbl = a.newlabel("mid_s4d")
        a("s_cmp_ge_u32 s2, 256")
        a(f"s_cbranch_scc1 {lbl}")
        gen_attn(a, force_slow=FORCE_SLOW); a("s_endpgm")
        a.label(lbl)
        lbl2 = a.newlabel("mid_exit")
        a("v_cmp_gt_u32 vcc, 256, v0")
        a("s_nop 1")
        a(f"s_cbranch_vccz {lbl2}")
        a(f"s_setprio {os.environ.get('S4PRIO', '1')}")
        (gen_conv if ARR == "B" else gen_s4d)(a, wg_base=256)
        a.label(lbl2)
        a("s_endpgm")
        launches.append(f"; @launch kernel=mid_kernel grid=(512,1,1) block=(512,1,1) lds={ATTN_LDS}")
    else:
        gen_attn(a, force_slow=FORCE_SLOW); a("s_endpgm")
        launches.append(f"; @launch kernel=mid_kernel grid=(256,1,1) block=(512,1,1) lds={ATTN_LDS}")
    descs.append(kernel_desc("mid_kernel", 128))
    kernel_header(a, "fin_kernel")
    if ARR in "AD":
        lbl = a.newlabel("fin_op")
        a("s_cmp_ge_u32 s2, 256")
        a(f"s_cbranch_scc1 {lbl}")
        (gen_conv if ARR == "A" else gen_s4d)(a); a("s_endpgm")
        a.label(lbl)
        gen_oproj(a, wg_base=256); a("s_endpgm")
        launches.append(f"; @launch kernel=fin_kernel grid=(512,1,1) block=(256,1,1) lds={S4D_LDS}")
    else:
        gen_oproj(a); a("s_endpgm")
        launches.append(f"; @launch kernel=fin_kernel grid=(256,1,1) block=(256,1,1) lds=65536")
    descs.append(kernel_desc("fin_kernel", 256))
    return hdr + "\n".join(launches) + "\n" + a.text() + "".join(descs)

def build_sep(diag=False):
    STAMP["on"] = diag
    V = (lambda n: 256 if n > 128 else 128) if diag else (lambda n: n)
    a = Asm()
    launches = []
    descs = []
    a.raw('.amdgcn_target "amdgcn-amd-amdhsa--gfx950"')
    kernel_header(a, "qkv_kernel"); gen_qkv5(a); a("s_endpgm")
    launches.append(f"; @launch kernel=qkv_kernel grid=(256,1,1) block=(256,1,1) lds={QKV_LDS}")
    descs.append(kernel_desc("qkv_kernel", V(QKV_VGPR)))
    kernel_header(a, "s4d_kernel"); gen_s4d(a); a("s_endpgm")
    launches.append(f"; @launch kernel=s4d_kernel grid=(256,1,1) block=(256,1,1) lds={S4D_LDS}")
    descs.append(kernel_desc("s4d_kernel", V(S4D_VGPR)))
    kernel_header(a, "attn_kernel"); gen_attn(a, force_slow=FORCE_SLOW); a("s_endpgm")
    launches.append(f"; @launch kernel=attn_kernel grid=(256,1,1) block=({ATTN_BLOCK},1,1) lds={ATTN_LDS}")
    descs.append(kernel_desc("attn_kernel", V(ATTN_VGPR)))
    kernel_header(a, "fin_kernel")
    gen_oproj(a); a("s_endpgm")
    launches.append(f"; @launch kernel=fin_kernel grid=(256,1,1) block=(256,1,1) lds=65536")
    descs.append(kernel_desc("fin_kernel", 256))
    return hdr + "\n".join(launches) + "\n" + a.text() + "".join(descs)

if __name__ == "__main__":
    out = sys.argv[1] if len(sys.argv) > 1 else f"cdna_kernels/{NAME}.s"
    b = build_sep if os.environ.get("SEP") else build
    open(out, "w").write(b(diag=(len(sys.argv) > 2)))
    print("wrote", out)
```

```python
from asmlib import *
import os
from k_gemm import WS_Q, WS_K, WS_V, WS_O, WS_KN, WS_TOTAL, QSCALE, MB
from k_attn import wave_max
from k_kgen import kgen_prefetch, kgen_tail, WS_ALL

QKV_LDS = 163840
QKV_VGPR = 128
XB = 98304

def gen_qkv5(a, wg_base=0, kgen=True):
    end = a.newlabel("qkv_end")
    if wg_base:
        a(f"s_sub_u32 s2, s2, {wg_base}")
    a("s_cmp_ge_u32 s2, 256")
    a(f"s_cbranch_scc1 {end}")
    stamp_init(a)
    a("s_load_dwordx2 s[4:5], s[0:1], 56")
    a("s_load_dwordx2 s[6:7], s[0:1], 64")
    a("s_load_dwordx2 s[8:9], s[0:1], 96")
    QM = os.environ.get("QM", "81")
    if QM == "42":
        a("s_and_b32 s13, s2, 3")
        a("s_lshl_b32 s13, s13, 2")
        a("s_bfe_u32 s10, s2, 0x20003")
        a("s_add_u32 s10, s10, s13")
        a("s_bfe_u32 s13, s2, 0x10002")
        a("s_lshl_b32 s13, s13, 3")
        a("s_lshr_b32 s11, s2, 5")
        a("s_add_u32 s11, s11, s13")
    elif QM == "81":
        a("s_and_b32 s13, s2, 7")
        a("s_lshl_b32 s13, s13, 1")
        a("s_bfe_u32 s10, s2, 0x10003")
        a("s_add_u32 s10, s10, s13")
        a("s_lshr_b32 s11, s2, 4")
    elif QM == "24":
        a("s_and_b32 s13, s2, 1")
        a("s_lshl_b32 s13, s13, 3")
        a("s_bfe_u32 s10, s2, 0x30003")
        a("s_add_u32 s10, s10, s13")
        a("s_bfe_u32 s13, s2, 0x20001")
        a("s_lshl_b32 s13, s13, 2")
        a("s_lshr_b32 s11, s2, 6")
        a("s_add_u32 s11, s11, s13")
    ACC = 0; WF = 48; XF = 84; XAD = 96; XVO = 104
    TID, LANE, H2, TOK, VW, VW2, t0, t1, t2 = range(108, 117)
    EP = 52
    a(f"v_mov_b32 v{TID}, v0")
    a(f"v_and_b32 v{LANE}, 63, v{TID}")
    a(f"v_lshrrev_b32 v{t0}, 6, v{TID}")
    a("s_nop 0")
    a(f"v_readfirstlane_b32 s12, v{t0}")
    a("s_waitcnt lgkmcnt(0)")
    srd(a, 16, 4, 2 * MB)
    srd(a, 20, 6, 512 * 1536 * 2)
    srd(a, 24, 8, WS_ALL)
    PR = 117
    if kgen: kgen_prefetch(a, PR, TID)
    a("s_mul_i32 s14, s11, 192")
    a("s_lshl_b32 s13, s10, 7")
    a("s_lshl_b32 s15, s12, 5")
    a("s_add_u32 s13, s13, s15")
    a("s_lshl_b32 s15, s12, 10")
    a("s_lshl_b32 s38, s12, 13")
    a(f"s_add_u32 s38, s38, {XB}")
    a(f"v_lshrrev_b32 v{t0}, 4, v{LANE}")
    a(f"v_and_b32 v{t1}, 15, v{LANE}")
    for i in range(4):
        a(f"v_add_u32 v{t2}, {4*i}, v{t0}")
        a(f"v_xor_b32 v{XVO+i}, v{t1}, v{t2}")
        a(f"v_lshlrev_b32 v{XVO+i}, 4, v{XVO+i}")
        a(f"v_add_u32 v{t2}, s13, v{t2}")
        a(f"v_lshl_add_u32 v{XVO+i}, v{t2}, 10, v{XVO+i}")
    def wload(i):
        a(f"v_add_u32 v{t0}, {256*i}, v{TID}")
        a(f"v_mul_u32_u24 v{t1}, 43691, v{t0}")
        a(f"v_lshrrev_b32 v{t1}, 19, v{t1}")
        a(f"v_mul_u32_u24 v{t1}, 2880, v{t1}")
        a(f"s_add_u32 m0, s15, {4096*i}")
        a(f"v_lshl_add_u32 v{t1}, v{t0}, 4, v{t1}")
        a(f"buffer_load_dwordx4 v{t1}, s[20:23], s14 offen lds")
    def xload(c):
        for i in range(8):
            a(f"s_add_u32 m0, s38, {(c&1)*32768 + i*1024}")
            a(f"s_mov_b32 s39, {(i>>2)*16384 + c*256}")
            a(f"buffer_load_dwordx4 v{XVO+(i&3)}, s[16:19], s39 offen lds")
    def issueW(c):
        for i in range(6 * c, 6 * c + 6):
            wload(i)
    issueW(0); xload(0); issueW(1); xload(1); issueW(2); issueW(3)
    a(f"v_and_b32 v{t0}, 31, v{LANE}")
    a(f"v_lshrrev_b32 v{H2}, 5, v{LANE}")
    a(f"v_add_u32 v{TOK}, s13, v{t0}")
    a(f"v_and_b32 v{t1}, 15, v{t0}")
    a(f"v_lshlrev_b32 v{t2}, 1, v{H2}")
    a(f"v_xor_b32 v{t1}, v{t1}, v{t2}")
    a(f"v_lshlrev_b32 v{t0}, 8, v{t0}")
    a(f"v_add_u32 v{t0}, s38, v{t0}")
    for kcl in range(4):
        for st in range(2):
            a(f"v_xor_b32 v{t2}, {4*kcl|st}, v{t1}")
            a(f"v_lshl_add_u32 v{XAD+2*kcl+st}, v{t2}, 4, v{t0}")
    a(f"v_bfe_u32 v{t0}, v{LANE}, 2, 2")
    a(f"v_lshl_add_u32 v{VW}, v{H2}, 4, v{t0}")
    a(f"v_mul_u32_u24 v{VW}, 192, v{VW}")
    a(f"v_bfe_u32 v{t0}, v{LANE}, 4, 1")
    a(f"v_lshl_add_u32 v{VW}, v{t0}, 5, v{VW}")
    a(f"v_and_b32 v{t0}, 3, v{LANE}")
    a(f"v_lshl_add_u32 v{VW}, v{t0}, 3, v{VW}")
    a(f"v_add_u32 v{VW2}, 49152, v{VW}")
    for r in range(48):
        a(f"v_mov_b32 v{ACC+r}, 0")
    steps = [(kc, st) for kc in range(16) for st in range(2)]
    def rd(idx):
        kc, st = steps[idx]
        buf = idx % 3
        off = (32 * kc + 8 * st) * 192
        reg = VW
        if off >= 49152:
            off -= 49152; reg = VW2
        a(f"ds_read_b128 {vr(XF+4*buf,4)}, v{XAD+2*(kc&3)+st} offset:{((kc>>2)&1)*32768}")
        for ct in range(3):
            base = WF + buf * 12 + ct * 4
            a(f"ds_read_b64_tr_b16 {vr(base,2)}, v{reg} offset:{off+ct*64}")
            a(f"ds_read_b64_tr_b16 {vr(base+2,2)}, v{reg} offset:{off+ct*64+768}")
    waits = [26, 20, 8, 0]
    for c in range(4):
        a(f"s_waitcnt vmcnt({waits[c]})")
        if c == 0: stamp(a)
        a("s_barrier")
        if c == 0: stamp(a)
        rd(8 * c)
        rd(8 * c + 1)
        for idx in range(8 * c, 8 * c + 8):
            last = 8 * c + 7
            if idx < last:
                a("s_waitcnt lgkmcnt(7)")
            else:
                a("s_waitcnt lgkmcnt(0)")
                if c + 2 < 4:
                    xload(c + 2)
            if idx + 2 <= last:
                rd(idx + 2)
            buf = idx % 3
            for ct in range(3):
                wf = WF + buf * 12 + ct * 4
                acc = vr(ACC + 16 * ct, 16)
                a(f"v_mfma_f32_32x32x16_bf16 {acc}, {vr(wf,4)}, {vr(XF+4*buf,4)}, {acc}")
    a.nop(16)
    stamp(a)
    a(f"v_lshlrev_b32 v{t0}, 15, v{H2}")
    a(f"v_lshl_add_u32 v{t0}, v{TOK}, 4, v{t0}")
    a(f"v_mov_b32 v{t1}, 0")
    a("s_mul_i32 s28, s11, 3")
    a("s_lshr_b32 s35, s13, 3")
    for ct in range(3):
        src0 = ACC + 16 * ct
        a(f"s_add_u32 s29, s28, {ct}")
        a("s_lshr_b32 s30, s29, 4")
        a("s_and_b32 s31, s29, 15")
        a(f"s_mov_b32 s32, {hexf(QSCALE)}")
        a("s_cmp_eq_u32 s30, 0")
        a("s_cselect_b32 s32, s32, 1.0")
        for r in range(16):
            a(f"v_mul_f32 v{src0+r}, s32, v{src0+r}")
        lblNK = a.newlabel("qkv_nok")
        a("s_cmp_lg_u32 s30, 1")
        a(f"s_cbranch_scc1 {lblNK}")
        a("s_lshl_b32 s33, s31, 9")
        a("s_add_u32 s33, s33, s35")
        a(f"s_add_u32 s33, s33, {WS_KN}")
        for hl in range(2):
            src = src0 + 8 * hl
            q = WF + 2 * hl
            a(f"v_mul_f32 v{q}, v{src}, v{src}")
            for i in range(1, 8):
                a(f"v_fmac_f32 v{q}, v{src+i}, v{src+i}")
            a(f"v_mov_b32 v{q+1}, v{q}")
            a("s_nop 1")
            a(f"v_permlane32_swap_b32 v{q}, v{q+1}")
            a("s_nop 1")
            a(f"v_add_f32 v{q}, v{q}, v{q+1}")
            wave_max(a, q)
        a("s_mov_b32 s36, 0")
        a("s_mov_b32 s37, 0x80000000")
        a("s_mov_b64 exec, s[36:37]")
        for hl in range(2):
            a(f"buffer_store_dword v{WF+2*hl}, v{t1}, s[24:27], s33 offen offset:{hl*256}")
        a("s_mov_b64 exec, -1")
        a.label(lblNK)
        a("s_lshl_b32 s33, s30, 21")
        a("s_lshl_b32 s34, s31, 17")
        a("s_add_u32 s33, s33, s34")
        for hl in range(2):
            src = src0 + 8 * hl
            dst = EP + (ct * 2 + hl) * 4
            for i in range(4):
                a(f"v_cvt_pk_bf16_f32 v{dst+i}, v{src+2*i}, v{src+2*i+1}")
            a(f"buffer_store_dwordx4 {vr(dst,4)}, v{t0}, s[24:27], s33 offen" + os.environ.get("QST", " nt"))
            a("s_add_u32 s33, s33, 65536")
    stamp(a)
    if kgen:
        a("s_barrier")
        kgen_tail(a, PR, TID, LANE, "s12", "s[24:27]")
    a("s_waitcnt vmcnt(0)") if STAMP["on"] else None
    stamp(a)
    a.label(end)
```

```python
from asmlib import *
import math
import numpy as np
from k_attn import wave_max

L2E = float(np.float32(math.log2(math.e)))
L2E_LO = float(np.float32(math.log2(math.e) - L2E))
LN2 = float(np.float32(math.log(2.0)))
I2P = float(np.float32(1.0 / (2 * math.pi)))
I2P_LO = float(np.float32(1.0 / (2 * math.pi) - I2P))

KD = 0
KM = 6144
UC = KM + 15360
RED = UC + 35328
UMX = 73216
OST = KM
SCR = 6144
S4D_LDS = 73728
S4D_VGPR = 128
ROWS = 528
UCS = 4416
CHS = 57 * ROWS

class RA:
    def __init__(self, start):
        self.n = start
        self.hi = start
    def __call__(self, k=1, align=1):
        while self.n % align: self.n += 1
        r = self.n
        self.n += k
        self.hi = max(self.hi, self.n)
        return r
    def mark(self): return self.n
    def reset(self, m): self.n = m

def gen_s4d(a, wg_base=0):
    end = a.newlabel("s4_end")
    a(f"s_cmp_ge_u32 s2, {256+wg_base}")
    a(f"s_cbranch_scc1 {end}")
    stamp_init(a)
    if wg_base:
        a(f"s_sub_u32 s2, s2, {wg_base}")
    a("s_load_dwordx4 s[4:7], s[0:1], 0")
    a("s_load_dwordx4 s[8:11], s[0:1], 16")
    a("s_load_dwordx4 s[12:15], s[0:1], 32")
    a("s_load_dwordx2 s[16:17], s[0:1], 48")
    a("s_load_dwordx2 s[18:19], s[0:1], 80")
    a("s_and_b32 s20, s2, 7")
    a("s_lshl_b32 s20, s20, 5")
    a("s_lshr_b32 s21, s2, 3")
    a("s_add_u32 s20, s20, s21")
    a("s_lshl_b32 s20, s20, 1")
    R = RA(0)
    TID = R(); LANE = R(); CH = R(); NM = R()
    t0 = R(); t1 = R(); t2 = R(); t3 = R()
    a(f"v_mov_b32 v{TID}, v0")
    a(f"v_and_b32 v{LANE}, 63, v{TID}")
    a(f"v_lshrrev_b32 v{t0}, 6, v{TID}")
    a(f"v_lshrrev_b32 v{CH}, 7, v{TID}")
    a(f"v_and_b32 v{NM}, 127, v{TID}")
    a("s_nop 0")
    a(f"v_readfirstlane_b32 s22, v{t0}")
    a("s_waitcnt lgkmcnt(0)")
    a("s_lshr_b32 s23, s22, 1")
    a("s_and_b32 s24, s22, 1")
    srd(a, 28, 4, 2048 * 512 * 2)
    srd(a, 32, 6, 512 * 128 * 2)
    srd(a, 36, 8, 512 * 128 * 2)
    srd(a, 40, 10, 512 * 128 * 2)
    srd(a, 44, 12, 512 * 128 * 2)
    srd(a, 48, 14, 1024)
    srd(a, 52, 16, 1024)
    srd(a, 56, 18, 2048 * 1024 * 2)
    a("s_add_u32 s25, s20, s23")
    a("s_lshl_b32 s26, s25, 8")
    DSK = R(); KSC = R(); UR = R(8)
    mk = R.mark()
    LA = R(); AI = R(); CR = R(); CI = R(); LDT = R(); CR2 = R(); CI2 = R()
    a(f"v_lshlrev_b32 v{t0}, 1, v{NM}")
    a(f"v_xor_b32 v{t2}, 128, v{t0}")
    a(f"buffer_load_ushort v{LA}, v{t0}, s[32:35], s26 offen")
    a(f"buffer_load_ushort v{AI}, v{t0}, s[36:39], s26 offen")
    a(f"buffer_load_ushort v{CR}, v{t0}, s[40:43], s26 offen")
    a(f"buffer_load_ushort v{CI}, v{t0}, s[44:47], s26 offen")
    a(f"buffer_load_ushort v{CR2}, v{t2}, s[40:43], s26 offen")
    a(f"buffer_load_ushort v{CI2}, v{t2}, s[44:47], s26 offen")
    a("s_lshl_b32 s26, s25, 1")
    a(f"v_mov_b32 v{t1}, 0")
    a(f"buffer_load_ushort v{LDT}, v{t1}, s[48:51], s26 offen")
    a(f"buffer_load_ushort v{DSK}, v{t1}, s[52:55], s26 offen")
    a(f"v_lshlrev_b32 v{t2}, 10, v{TID}")
    a("s_lshl_b32 s26, s20, 1")
    for k in range(8):
        a(f"buffer_load_dword v{UR+k}, v{t2}, s[28:31], s26 offen")
        if k < 7:
            a("s_add_u32 s26, s26, 262144")
    a(f"s_mov_b32 s60, {hexf(L2E)}")
    a(f"s_mov_b32 s61, {hexf(L2E_LO)}")
    a(f"s_mov_b32 s62, {hexf(LN2)}")
    a(f"s_mov_b32 s63, {hexf(I2P)}")
    a(f"s_mov_b32 s64, {hexf(I2P_LO)}")
    a("s_mov_b32 s65, 0xffff0000")
    a("s_waitcnt vmcnt(8)")
    for r in (LA, AI, CR, CI, LDT, DSK, CR2, CI2):
        a(f"v_lshlrev_b32 v{r}, 16, v{r}")
    def exp_bf16(x):
        a(f"v_mul_f32 v{t0}, s60, v{x}")
        a(f"v_fma_f32 v{t1}, v{x}, s60, -v{t0}")
        a(f"v_fmac_f32 v{t1}, s61, v{x}")
        a(f"v_exp_f32 v{t0}, v{t0}")
        a(f"v_mul_f32 v{t1}, s62, v{t1}")
        a(f"v_fma_f32 v{t0}, v{t0}, v{t1}, v{t0}")
        a(f"v_cvt_pk_bf16_f32 v{t0}, v{t0}, v{t0}")
        a(f"v_lshlrev_b32 v{x}, 16, v{t0}")
    exp_bf16(LDT)
    exp_bf16(LA)
    ER = R(); FIH = R(); FIL = R()
    a(f"v_mul_f32 v{ER}, v{LA}, v{LDT}")
    a(f"v_mul_f32 v{ER}, -1.0, v{ER}")
    a(f"v_mul_f32 v{ER}, s60, v{ER}")
    a(f"v_mul_f32 v{AI}, v{AI}, v{LDT}")
    a(f"v_mul_f32 v{FIH}, s63, v{AI}")
    a(f"v_fma_f32 v{FIL}, v{AI}, s63, -v{FIH}")
    a(f"v_fmac_f32 v{FIL}, s64, v{AI}")
    a(f"v_max3_f32 v{t0}, abs(v{CR}), abs(v{CI}), abs(v{CR2})")
    a(f"v_max_f32 v{t0}, v{t0}, abs(v{CI2})")
    wave_max(a, t0)
    a(f"v_readlane_b32 s66, v{t0}, 63")
    a("s_nop 3")
    a(f"v_mov_b32 v{t0}, s66")
    a(f"v_frexp_exp_i32_f32 v{t1}, v{t0}")
    a(f"v_sub_u32 v{t2}, 0, v{t1}")
    a(f"v_ldexp_f32 v{CR}, v{CR}, v{t2}")
    a(f"v_ldexp_f32 v{CI}, v{CI}, v{t2}")
    a(f"v_sub_f32 v{CI}, 0, v{CI}")
    a(f"v_add_u32 v{t1}, 8, v{t1}")
    a(f"v_ldexp_f32 v{KSC}, v{LDT}, v{t1}")
    def pw(t, re, im, conj=False):
        a(f"s_mov_b32 s66, {hexf(float(t))}")
        a(f"v_mul_f32 v{t0}, s66, v{ER}")
        a(f"v_exp_f32 v{t0}, v{t0}")
        a(f"v_mul_f32 v{t1}, s66, v{FIH}")
        a(f"v_fract_f32 v{t1}, v{t1}")
        a(f"v_fmac_f32 v{t1}, s66, v{FIL}")
        a(f"v_cos_f32 v{t2}, v{t1}")
        a(f"v_sin_f32 v{t3}, v{t1}")
        a("s_nop 0")
        a(f"v_mul_f32 v{re}, v{t0}, v{t2}")
        if conj:
            a(f"v_mul_f32 v{im}, -v{t0}, v{t3}")
        else:
            a(f"v_mul_f32 v{im}, v{t0}, v{t3}")
    def cmul(d, x, w, t):
        a(f"v_pk_mul_f32 {vr(t,2)}, {vr(x,2)}, {vr(w,2)} op_sel:[1,1] op_sel_hi:[1,0] neg_lo:[0,1]")
        a(f"v_pk_fma_f32 {vr(d,2)}, {vr(x,2)}, {vr(w,2)}, {vr(t,2)} op_sel_hi:[0,1,1]")
    WFp = R(2, 2); WGp = R(2, 2); XF_ = R(2, 2); XG_ = R(2, 2); TF = R(2, 2); TG = R(2, 2); CP = R(2, 2); WB = R(2, 2)
    HF = R(); HG = R()
    SW = R(); SRD_ = R(); KDW = R()
    a(f"v_mov_b32 v{CP}, v{CR}")
    a(f"v_mov_b32 v{CP+1}, v{CI}")
    a(f"v_mul_u32_u24 v{SW}, {CHS}, v{CH}")
    a(f"v_lshl_add_u32 v{SW}, v{NM}, 2, v{SW}")
    a(f"v_add_u32 v{SW}, {SCR}, v{SW}")
    a(f"v_and_b32 v{t0}, 15, v{LANE}")
    a(f"v_mul_u32_u24 v{SRD_}, {ROWS}, v{t0}")
    a(f"v_lshrrev_b32 v{t1}, 4, v{LANE}")
    a(f"v_lshl_add_u32 v{SRD_}, v{t1}, 4, v{SRD_}")
    a(f"s_mul_i32 s26, s23, {CHS}")
    a(f"s_mul_i32 s27, s24, {16*ROWS}")
    a("s_add_u32 s26, s26, s27")
    a(f"s_add_u32 s26, s26, {SCR}")
    a(f"v_add_u32 v{SRD_}, s26, v{SRD_}")
    a(f"v_lshlrev_b32 v{KDW}, 8, v{t1}")
    a(f"v_lshl_add_u32 v{KDW}, v{t0}, 2, v{KDW}")
    a("s_mul_i32 s26, s23, 3072")
    a(f"v_add_u32 v{KDW}, s26, v{KDW}")
    FR = R(16, 4); DACC = R(4, 4)
    stamp(a)
    for rnd in range(2):
        for sl in range(2):
            s = 2 * rnd + sl
            nG = [16, 8, 8, 9][s]
            if s == 0:
                pw(1, WFp, WFp + 1)
                pw(16, WGp, WGp + 1, conj=True)
                a(f"v_mov_b32 v{XG_}, v{CR}")
                a(f"v_mov_b32 v{XG_+1}, v{CI}")
            else:
                cmul(WFp, WFp, WFp, TF)
                cmul(WGp, WGp, WGp, TG)
                if s == 1:
                    pw(256, WB, WB + 1, conj=True)
                else:
                    cmul(WB, WB, WB, TF)
                cmul(XG_, CP, WB, TG)
            a(f"v_mov_b32 v{XF_}, 1.0")
            a(f"v_mov_b32 v{XF_+1}, 0")
            for r in range(16):
                a(f"v_cvt_pk_f16_f32 v{HF}, v{XF_}, v{XF_+1}")
                if r < nG:
                    a(f"v_cvt_pk_f16_f32 v{HG}, v{XG_}, v{XG_+1}")
                if r < 15:
                    a(f"v_pk_mul_f32 {vr(TF,2)}, {vr(XF_,2)}, {vr(WFp,2)} op_sel:[1,1] op_sel_hi:[1,0] neg_lo:[0,1]")
                if r < nG - 1:
                    a(f"v_pk_mul_f32 {vr(TG,2)}, {vr(XG_,2)}, {vr(WGp,2)} op_sel:[1,1] op_sel_hi:[1,0] neg_lo:[0,1]")
                a(f"ds_write_b32 v{SW}, v{HF} offset:{(16*sl+r)*ROWS}")
                if r < nG:
                    a(f"ds_write_b32 v{SW}, v{HG} offset:{(32+16*sl+r)*ROWS}")
                if r < 15:
                    a(f"v_pk_fma_f32 {vr(XF_,2)}, {vr(XF_,2)}, {vr(WFp,2)}, {vr(TF,2)} op_sel_hi:[0,1,1]")
                if r < nG - 1:
                    a(f"v_pk_fma_f32 {vr(XG_,2)}, {vr(XG_,2)}, {vr(WGp,2)}, {vr(TG,2)} op_sel_hi:[0,1,1]")
        a("s_waitcnt lgkmcnt(0)")
        a("s_barrier")
        for r in range(4):
            a(f"v_mov_b32 v{DACC+r}, 0")
        d = vr(DACC, 4)
        for kk in range(2):
            for ks in range(4):
                k8 = 4 * kk + ks
                a(f"ds_read_b128 {vr(FR+4*(ks&1),4)}, v{SRD_} offset:{32*ROWS + k8*64}")
                a(f"ds_read_b128 {vr(FR+8+4*(ks&1),4)}, v{SRD_} offset:{k8*64}")
                if ks & 1:
                    a("s_waitcnt lgkmcnt(0)")
                    a(f"v_mfma_f32_16x16x32_f16 {d}, {vr(FR,4)}, {vr(FR+8,4)}, {d}")
                    a(f"v_mfma_f32_16x16x32_f16 {d}, {vr(FR+4,4)}, {vr(FR+12,4)}, {d}")
        a.nop(10)
        a(f"s_lshl_b32 s26, s24, 9")
        a(f"s_add_u32 s26, s26, {(256*rnd+128)*4}")
        if rnd == 0:
            a("s_cmp_eq_u32 s24, 0")
            a("s_cselect_b32 s26, 0, s26")
        a(f"v_add_u32 v{t0}, s26, v{KDW}")
        if rnd == 0:
            pass
        for r in range(4):
            a(f"ds_write_b32 v{t0}, v{DACC+r} offset:{16*r*4}")
        a("s_waitcnt lgkmcnt(0)")
        a("s_barrier")
        if rnd == 1:
            lbl = a.newlabel("s4_rw")
            a("s_cmp_eq_u32 s24, 0")
            a(f"s_cbranch_scc1 {lbl}")
            for r in range(4):
                a(f"ds_write_b32 v{t0}, v{DACC+r} offset:{16*r*4}")
            a.label(lbl)
    R.reset(mk)
    stamp(a)
    M = [R(), R()]
    a("s_waitcnt vmcnt(0)")
    for c in range(2):
        for k in range(8):
            if c == 0:
                a(f"v_lshlrev_b32 v{t0}, 16, v{UR+k}")
            else:
                a(f"v_and_b32 v{t0}, s65, v{UR+k}")
            if k == 0:
                a(f"v_and_b32 v{M[c]}, 0x7fffffff, v{t0}")
            else:
                a(f"v_max_f32 v{M[c]}, v{M[c]}, abs(v{t0})")
        wave_max(a, M[c])
    a("s_lshl_b32 s26, s22, 3")
    a(f"s_add_u32 s26, s26, {UMX}")
    a(f"v_mov_b32 v{t0}, s26")
    a("s_mov_b32 s68, 0")
    a("s_mov_b32 s69, 0x80000000")
    a("s_mov_b64 exec, s[68:69]")
    a(f"ds_write_b64 v{t0}, {vr(M[0],2)}")
    a("s_mov_b64 exec, -1")
    Z = R(4, 4)
    for r in range(4):
        a(f"v_mov_b32 v{Z+r}, 0")
    a(f"v_lshlrev_b32 v{t0}, 4, v{TID}")
    a(f"v_add_u32 v{t1}, {UC}, v{t0}")
    for k in range(9):
        a(f"ds_write_b128 v{t1}, {vr(Z,4)} offset:{k*4096}")
    a(f"v_cmp_gt_u32 vcc, 155, v{TID}")
    a("s_and_saveexec_b64 s[68:69], vcc")
    for c in range(2):
        a(f"ds_write_b128 v{t0}, {vr(Z,4)} offset:{KM + c*7680}")
    a("s_mov_b64 exec, s[68:69]")
    a("s_waitcnt lgkmcnt(0)")
    a("s_barrier")
    FJ = R(); IDX = R(16); ALT = R()
    a("s_mul_i32 s26, s23, 3072")
    a(f"v_lshlrev_b32 v{t0}, 4, v{NM}")
    a(f"v_cvt_f32_u32 v{FJ}, v{t0}")
    a(f"v_lshlrev_b32 v{ALT}, 6, v{NM}")
    a(f"v_add_u32 v{ALT}, s26, v{ALT}")
    a(f"v_cmp_gt_u32 vcc, 8, v{NM}")
    a(f"s_sub_u32 s26, s26, {17024*4}")
    for p in range(8):
        e = 2 * p
        a(f"v_add_f32 v{t0}, {hexf(float(e))}, v{FJ}")
        a(f"v_add_f32 v{t1}, {hexf(float(e+1))}, v{FJ}")
        a(f"v_cvt_pk_bf16_f32 v{t0}, v{t0}, v{t1}")
        a(f"s_sub_u32 s27, s26, {4*e}")
        a(f"v_and_b32 v{t1}, 0xffff, v{t0}")
        a(f"v_lshl_add_u32 v{t1}, v{t1}, 2, s27")
        a(f"v_cndmask_b32 v{t1}, v{t1}, v{ALT}, vcc")
        a(f"ds_read_b32 v{IDX+e}, v{t1} offset:{4*e}")
        a(f"s_sub_u32 s27, s26, {4*(e+1)}")
        a(f"v_lshrrev_b32 v{t0}, 16, v{t0}")
        a(f"v_lshl_add_u32 v{t0}, v{t0}, 2, s27")
        a(f"v_cndmask_b32 v{t0}, v{t0}, v{ALT}, vcc")
        a(f"ds_read_b32 v{IDX+e+1}, v{t0} offset:{4*(e+1)}")
    UM = R(8, 4)
    a(f"v_mov_b32 v{t0}, {UMX}")
    a(f"ds_read_b128 {vr(UM,4)}, v{t0}")
    a(f"ds_read_b128 {vr(UM+4,4)}, v{t0} offset:16")
    KW = R()
    a(f"v_lshrrev_b32 v{t0}, 1, v{NM}")
    a(f"v_mul_u32_u24 v{KW}, 80, v{t0}")
    a(f"v_and_b32 v{t0}, 1, v{NM}")
    a(f"v_lshl_add_u32 v{KW}, v{t0}, 5, v{KW}")
    a(f"v_mul_u32_u24 v{t0}, 7680, v{CH}")
    a(f"v_add_u32 v{KW}, v{KW}, v{t0}")
    a(f"v_add_u32 v{KW}, {KM + 31*80}, v{KW}")
    HP = R(8, 4)
    a(f"s_mov_b32 s66, {hexf(2.0**-7)}")
    a("s_waitcnt lgkmcnt(0)")
    for p in range(8):
        a(f"v_mul_f32 v{IDX+2*p}, s66, v{IDX+2*p}")
        a(f"v_mul_f32 v{IDX+2*p+1}, s66, v{IDX+2*p+1}")
        a(f"v_cvt_pk_f16_f32 v{HP+p}, v{IDX+2*p}, v{IDX+2*p+1}")
    a(f"ds_write_b128 v{KW}, {vr(HP,4)}")
    a(f"ds_write_b128 v{KW}, {vr(HP+4,4)} offset:16")
    EU = [R(), R()]
    for c in range(2):
        a(f"v_max3_f32 v{t0}, v{UM+c}, v{UM+2+c}, v{UM+4+c}")
        a(f"v_max_f32 v{t0}, v{t0}, v{UM+6+c}")
        a(f"v_frexp_exp_i32_f32 v{t0}, v{t0}")
        a(f"v_sub_u32 v{EU[c]}, 15, v{t0}")
    a(f"v_cmp_eq_u32 vcc, 0, v{CH}")
    a("s_nop 1")
    a(f"v_cndmask_b32 v{t0}, v{EU[1]}, v{EU[0]}, vcc")
    a(f"v_sub_u32 v{t0}, 0, v{t0}")
    a(f"v_ldexp_f32 v{KSC}, v{KSC}, v{t0}")
    NEU = R()
    a(f"v_mov_b32 v{NEU}, v{t0}")
    stamp(a)
    UW = R()
    a(f"v_lshlrev_b32 v{t0}, 1, v{TID}")
    a(f"v_sub_u32 v{UW}, {UC + 2*2047 - 512*7}, v{t0}")
    for k in range(8):
        a(f"v_lshlrev_b32 v{t2}, 16, v{UR+k}")
        a(f"v_and_b32 v{t3}, s65, v{UR+k}")
        a(f"v_ldexp_f32 v{t2}, v{t2}, v{EU[0]}")
        a(f"v_ldexp_f32 v{t3}, v{t3}, v{EU[1]}")
        a(f"v_cvt_pk_f16_f32 v{t2}, v{t2}, v{t3}")
        for phi in range(4):
            off = phi * (UCS - 2) + 512 * (7 - k)
            need_mask = (k == 7 and phi > 0)
            if need_mask:
                a(f"v_cmp_gt_u32 vcc, {256-phi}, v{TID}")
                a("s_and_saveexec_b64 s[68:69], vcc")
            a(f"ds_write_b16 v{UW}, v{t2} offset:{off}")
            a(f"ds_write_b16_d16_hi v{UW}, v{t2} offset:{off+17664}")
            if need_mask:
                a("s_mov_b64 exec, s[68:69]")
    keepNEU = UR
    a(f"v_mov_b32 v{keepNEU}, v{NEU}")
    NEU = keepNEU
    R.reset(mk)
    a("s_waitcnt lgkmcnt(0)")
    a("s_barrier")
    stamp(a)
    A31 = R(); H2 = R(); VB = R(); VA = R()
    a(f"v_and_b32 v{A31}, 31, v{LANE}")
    a(f"v_lshrrev_b32 v{H2}, 5, v{LANE}")
    a(f"v_mul_u32_u24 v{VB}, 80, v{A31}")
    a(f"v_lshl_add_u32 v{VB}, v{H2}, 4, v{VB}")
    a("s_mul_i32 s26, s23, 7680")
    a(f"s_add_u32 s26, s26, {KM + 31*80}")
    a(f"v_add_u32 v{VB}, s26, v{VB}")
    a(f"v_and_b32 v{t0}, 3, v{A31}")
    a(f"v_sub_u32 v{t0}, 3, v{t0}")
    a(f"v_mul_u32_u24 v{VA}, {UCS}, v{t0}")
    a(f"v_lshrrev_b32 v{t0}, 2, v{A31}")
    a(f"v_lshlrev_b32 v{t0}, 3, v{t0}")
    a(f"v_sub_u32 v{VA}, v{VA}, v{t0}")
    a(f"v_lshl_add_u32 v{VA}, v{H2}, 4, v{VA}")
    a("s_mul_i32 s26, s23, 17664")
    a(f"s_add_u32 s26, s26, {UC + 2*2044}")
    a(f"v_add_u32 v{VA}, s26, v{VA}")
    ACC0 = R(16, 4); ACC1 = R(16, 4)
    for r in range(16):
        a(f"v_mov_b32 v{ACC0+r}, 0")
        a(f"v_mov_b32 v{ACC1+r}, 0")
    BF = [R(8, 4), R(8, 4)]
    AF = [R(16, 4), R(16, 4)]
    VBc = R(); VAc = R()
    c1 = vr(ACC1, 16); c0 = vr(ACC0, 16)
    def conv_range(d_hi, d_lo, two):
        n = d_hi - d_lo + 1
        assert n % 2 == 0
        nl = 2 + (8 if two else 4)
        a(f"v_add_u32 v{VBc}, {((d_hi-1)*80) & 0xffffffff}, v{VB}")
        a(f"v_add_u32 v{VAc}, {(-64*(32-d_hi+1)) & 0xffffffff}, v{VA}")
        def rd(buf, first):
            bo = 80 if first else 0
            ao = 64 if first else 0
            a(f"ds_read_b128 {vr(BF[buf],4)}, v{VBc} offset:{bo}")
            a(f"ds_read_b128 {vr(BF[buf]+4,4)}, v{VBc} offset:{bo+32}")
            for h in range(2):
                a(f"ds_read_b64 {vr(AF[buf]+4*h,2)}, v{VAc} offset:{ao+32*h}")
                a(f"ds_read_b64 {vr(AF[buf]+4*h+2,2)}, v{VAc} offset:{ao+32*h+8}")
            if two:
                for h in range(2):
                    a(f"ds_read_b64 {vr(AF[buf]+8+4*h,2)}, v{VAc} offset:{2048+ao+32*h}")
                    a(f"ds_read_b64 {vr(AF[buf]+8+4*h+2,2)}, v{VAc} offset:{2048+ao+32*h+8}")
        def mm(buf):
            for h in range(2):
                a(f"v_mfma_f32_32x32x16_f16 {c1}, {vr(AF[buf]+4*h,4)}, {vr(BF[buf]+4*h,4)}, {c1}")
                if two:
                    a(f"v_mfma_f32_32x32x16_f16 {c0}, {vr(AF[buf]+8+4*h,4)}, {vr(BF[buf]+4*h,4)}, {c0}")
        rd(0, True)
        a(f"s_mov_b32 s67, {n//2}")
        lp = a.newlabel("s4_conv")
        a.label(lp)
        rd(1, False)
        a(f"v_subrev_u32 v{VBc}, 160, v{VBc}")
        a(f"v_subrev_u32 v{VAc}, 128, v{VAc}")
        a(f"s_waitcnt lgkmcnt({nl})")
        mm(0)
        rd(0, True)
        a(f"s_waitcnt lgkmcnt({nl})")
        mm(1)
        a("s_sub_u32 s67, s67, 1")
        a("s_cmp_lg_u32 s67, 0")
        a(f"s_cbranch_scc1 {lp}")
        a("s_waitcnt lgkmcnt(0)")
    lblB = a.newlabel("s4_partB"); lblJ = a.newlabel("s4_join")
    a("s_cmp_eq_u32 s24, 1")
    a(f"s_cbranch_scc1 {lblB}")
    conv_range(32, 1, False)
    conv_range(0, -7, True)
    a(f"s_branch {lblJ}")
    a.label(lblB)
    conv_range(-8, -31, True)
    a.label(lblJ)
    a.nop(16)
    stamp(a)
    RW = R()
    a(f"v_lshlrev_b32 v{RW}, 2, v{LANE}")
    a("s_lshl_b32 s26, s22, 12")
    a(f"s_add_u32 s26, s26, {RED}")
    a(f"v_add_u32 v{t2}, s26, v{RW}")
    a("s_xor_b32 s27, s22, 1")
    a("s_lshl_b32 s27, s27, 12")
    a(f"s_add_u32 s27, s27, {RED}")
    a(f"v_add_u32 v{t3}, s27, v{RW}")
    lblB2 = a.newlabel("s4_xB"); lblJ2 = a.newlabel("s4_xJ")
    a("s_cmp_eq_u32 s24, 1")
    a(f"s_cbranch_scc1 {lblB2}")
    for r in range(16):
        a(f"ds_write_b32 v{t2}, v{ACC0+r} offset:{r*256}")
    a(f"s_branch {lblJ2}")
    a.label(lblB2)
    for r in range(16):
        a(f"ds_write_b32 v{t2}, v{ACC1+r} offset:{r*256}")
    for r in range(16):
        a(f"v_mov_b32 v{ACC1+r}, v{ACC0+r}")
    a.label(lblJ2)
    a("s_waitcnt lgkmcnt(0)")
    a("s_barrier")
    for r in range(16):
        a(f"ds_read_b32 v{ACC0+r}, v{t3} offset:{r*256}")
    LB = R()
    a("s_xor_b32 s26, s24, 1")
    a("s_lshl_b32 s26, s26, 10")
    a(f"v_lshlrev_b32 v{LB}, 5, v{A31}")
    a(f"v_lshl_add_u32 v{LB}, v{H2}, 2, v{LB}")
    a(f"v_add_u32 v{LB}, s26, v{LB}")
    a("s_mul_i32 s26, s23, 17664")
    a(f"s_add_u32 s26, s26, {UC + 2*2044 - 48}")
    a(f"v_lshlrev_b32 v{t0}, 1, v{LB}")
    a(f"v_sub_u32 v{t0}, s26, v{t0}")
    UV = AF[0]
    for i in range(4):
        a(f"ds_read_b64 {vr(UV+2*i,2)}, v{t0} offset:{48-16*i}")
    a(f"v_lshlrev_b32 v{t2}, 1, v{LB}")
    a("s_lshl_b32 s26, s23, 12")
    a(f"s_add_u32 s26, s26, {OST}")
    a(f"v_add_u32 v{t2}, s26, v{t2}")
    a("s_waitcnt lgkmcnt(0)")
    UF = AF[1]; OP = BF[0]
    for i in range(4):
        a(f"v_cvt_f32_f16 v{UF+3}, v{UV+2*i}")
        a(f"v_lshrrev_b32 v{t0}, 16, v{UV+2*i}")
        a(f"v_cvt_f32_f16 v{UF+2}, v{t0}")
        a(f"v_cvt_f32_f16 v{UF+1}, v{UV+2*i+1}")
        a(f"v_lshrrev_b32 v{t0}, 16, v{UV+2*i+1}")
        a(f"v_cvt_f32_f16 v{UF+0}, v{t0}")
        for jj in range(4):
            r = 4 * i + jj
            a(f"v_add_f32 v{ACC1+r}, v{ACC1+r}, v{ACC0+r}")
            a(f"v_mul_f32 v{ACC1+r}, v{ACC1+r}, v{KSC}")
            a(f"v_ldexp_f32 v{UF+jj}, v{UF+jj}, v{NEU}")
            a(f"v_mul_f32 v{UF+jj}, v{UF+jj}, v{DSK}")
            a(f"v_cvt_pk_bf16_f32 v{t0}, v{ACC1+r}, v{UF+jj}")
            a(f"v_lshlrev_b32 v{t1}, 16, v{t0}")
            a(f"v_and_b32 v{t0}, s65, v{t0}")
            a(f"v_add_f32 v{UF+4+jj}, v{t0}, v{t1}")
        a(f"v_cvt_pk_bf16_f32 v{OP+2*i}, v{UF+4}, v{UF+5}")
        a(f"v_cvt_pk_bf16_f32 v{OP+2*i+1}, v{UF+6}, v{UF+7}")
        a(f"ds_write_b64 v{t2}, {vr(OP+2*i,2)} offset:{16*i}")
    a("s_waitcnt lgkmcnt(0)")
    a("s_barrier")
    a(f"v_lshlrev_b32 v{t0}, 1, v{TID}")
    a(f"v_add_u32 v{t0}, {OST}, v{t0}")
    O0 = ACC0; O1 = ACC0 + 8
    for k in range(8):
        a(f"ds_read_u16 v{O0+k}, v{t0} offset:{k*512}")
        a(f"ds_read_u16 v{O1+k}, v{t0} offset:{4096+k*512}")
    a(f"v_lshlrev_b32 v{t1}, 11, v{TID}")
    a("s_lshl_b32 s26, s20, 1")
    a("s_waitcnt lgkmcnt(0)")
    for k in range(8):
        a(f"v_lshl_or_b32 v{O0+k}, v{O1+k}, 16, v{O0+k}")
        a(f"buffer_store_dword v{O0+k}, v{t1}, s[56:59], s26 offen")
        if k < 7:
            a("s_add_u32 s26, s26, 524288")
    a("s_waitcnt vmcnt(0)") if STAMP["on"] else None
    stamp(a)
    a.label(end)
    assert R.hi <= S4D_VGPR, R.hi


def gen_conv(a, wg_base=0):
    from k_kgen import WS_KP, WS_KS, WS_ALL
    end = a.newlabel("s4_end")
    a(f"s_cmp_ge_u32 s2, {256+wg_base}")
    a(f"s_cbranch_scc1 {end}")
    stamp_init(a)
    if wg_base:
        a(f"s_sub_u32 s2, s2, {wg_base}")
    a("s_load_dwordx2 s[4:5], s[0:1], 0")
    a("s_load_dwordx2 s[6:7], s[0:1], 96")
    a("s_load_dwordx2 s[16:17], s[0:1], 48")
    a("s_load_dwordx2 s[18:19], s[0:1], 80")
    a("s_and_b32 s20, s2, 7")
    a("s_lshl_b32 s20, s20, 5")
    a("s_lshr_b32 s21, s2, 3")
    a("s_add_u32 s20, s20, s21")
    a("s_lshl_b32 s20, s20, 1")
    R = RA(0)
    TID = R(); LANE = R(); CH = R(); NM = R()
    t0 = R(); t1 = R(); t2 = R(); t3 = R()
    a(f"v_mov_b32 v{TID}, v0")
    a(f"v_and_b32 v{LANE}, 63, v{TID}")
    a(f"v_lshrrev_b32 v{t0}, 6, v{TID}")
    a(f"v_lshrrev_b32 v{CH}, 7, v{TID}")
    a(f"v_and_b32 v{NM}, 127, v{TID}")
    a("s_nop 0")
    a(f"v_readfirstlane_b32 s22, v{t0}")
    a("s_waitcnt lgkmcnt(0)")
    a("s_lshr_b32 s23, s22, 1")
    a("s_and_b32 s24, s22, 1")
    srd(a, 28, 4, 2048 * 512 * 2)
    srd(a, 32, 6, WS_ALL)
    srd(a, 52, 16, 1024)
    srd(a, 56, 18, 2048 * 1024 * 2)
    a("s_add_u32 s25, s20, s23")
    DSK = R(); KSC = R(); UR = R(8)
    mk = R.mark()
    KP = R(8, 4)
    a("s_lshl_b32 s26, s25, 1")
    a(f"v_mov_b32 v{t1}, 0")
    a(f"buffer_load_ushort v{DSK}, v{t1}, s[52:55], s26 offen")
    a("s_lshl_b32 s26, s25, 2")
    a(f"s_add_u32 s26, s26, {WS_KS}")
    a(f"buffer_load_dword v{KSC}, v{t1}, s[32:35], s26 offen")
    a("s_lshl_b32 s26, s20, 12")
    a(f"s_add_u32 s26, s26, {WS_KP}")
    a(f"v_lshlrev_b32 v{t0}, 5, v{TID}")
    a(f"buffer_load_dwordx4 {vr(KP,4)}, v{t0}, s[32:35], s26 offen")
    a(f"buffer_load_dwordx4 {vr(KP+4,4)}, v{t0}, s[32:35], s26 offen offset:16")
    a(f"v_lshlrev_b32 v{t2}, 10, v{TID}")
    a("s_lshl_b32 s26, s20, 1")
    for k in range(8):
        a(f"buffer_load_dword v{UR+k}, v{t2}, s[28:31], s26 offen")
        if k < 7:
            a("s_add_u32 s26, s26, 262144")
    a("s_mov_b32 s65, 0xffff0000")
    stamp(a)
    M = [R(), R()]
    a("s_waitcnt vmcnt(0)")
    a(f"v_lshlrev_b32 v{DSK}, 16, v{DSK}")
    for c in range(2):
        for k in range(8):
            if c == 0:
                a(f"v_lshlrev_b32 v{t0}, 16, v{UR+k}")
            else:
                a(f"v_and_b32 v{t0}, s65, v{UR+k}")
            if k == 0:
                a(f"v_and_b32 v{M[c]}, 0x7fffffff, v{t0}")
            else:
                a(f"v_max_f32 v{M[c]}, v{M[c]}, abs(v{t0})")
        wave_max(a, M[c])
    a("s_lshl_b32 s26, s22, 3")
    a(f"s_add_u32 s26, s26, {UMX}")
    a(f"v_mov_b32 v{t0}, s26")
    a("s_mov_b32 s68, 0")
    a("s_mov_b32 s69, 0x80000000")
    a("s_mov_b64 exec, s[68:69]")
    a(f"ds_write_b64 v{t0}, {vr(M[0],2)}")
    a("s_mov_b64 exec, -1")
    Z = R(4, 4)
    for r in range(4):
        a(f"v_mov_b32 v{Z+r}, 0")
    a(f"v_lshlrev_b32 v{t0}, 4, v{TID}")
    a(f"v_add_u32 v{t1}, {UC}, v{t0}")
    for k in range(9):
        a(f"ds_write_b128 v{t1}, {vr(Z,4)} offset:{k*4096}")
    a(f"v_cmp_gt_u32 vcc, 155, v{TID}")
    a("s_and_saveexec_b64 s[68:69], vcc")
    for c in range(2):
        a(f"ds_write_b128 v{t0}, {vr(Z,4)} offset:{KM + c*7680}")
    a("s_mov_b64 exec, s[68:69]")
    a("s_waitcnt lgkmcnt(0)")
    a("s_barrier")
    UM = R(8, 4)
    a(f"v_mov_b32 v{t0}, {UMX}")
    a(f"ds_read_b128 {vr(UM,4)}, v{t0}")
    a(f"ds_read_b128 {vr(UM+4,4)}, v{t0} offset:16")
    KW = R()
    a(f"v_lshrrev_b32 v{t0}, 1, v{NM}")
    a(f"v_mul_u32_u24 v{KW}, 80, v{t0}")
    a(f"v_and_b32 v{t0}, 1, v{NM}")
    a(f"v_lshl_add_u32 v{KW}, v{t0}, 5, v{KW}")
    a(f"v_mul_u32_u24 v{t0}, 7680, v{CH}")
    a(f"v_add_u32 v{KW}, v{KW}, v{t0}")
    a(f"v_add_u32 v{KW}, {KM + 31*80}, v{KW}")
    a(f"ds_write_b128 v{KW}, {vr(KP,4)}")
    a(f"ds_write_b128 v{KW}, {vr(KP+4,4)} offset:16")
    a("s_waitcnt lgkmcnt(2)")
    EU = [R(), R()]
    for c in range(2):
        a(f"v_max3_f32 v{t0}, v{UM+c}, v{UM+2+c}, v{UM+4+c}")
        a(f"v_max_f32 v{t0}, v{t0}, v{UM+6+c}")
        a(f"v_frexp_exp_i32_f32 v{t0}, v{t0}")
        a(f"v_sub_u32 v{EU[c]}, 15, v{t0}")
    a(f"v_cmp_eq_u32 vcc, 0, v{CH}")
    a("s_nop 1")
    a(f"v_cndmask_b32 v{t0}, v{EU[1]}, v{EU[0]}, vcc")
    a(f"v_sub_u32 v{t0}, 0, v{t0}")
    a(f"v_ldexp_f32 v{KSC}, v{KSC}, v{t0}")
    NEU = R()
    a(f"v_mov_b32 v{NEU}, v{t0}")
    stamp(a)
    UW = R()
    a(f"v_lshlrev_b32 v{t0}, 1, v{TID}")
    a(f"v_sub_u32 v{UW}, {UC + 2*2047 - 512*7}, v{t0}")
    for k in range(8):
        a(f"v_lshlrev_b32 v{t2}, 16, v{UR+k}")
        a(f"v_and_b32 v{t3}, s65, v{UR+k}")
        a(f"v_ldexp_f32 v{t2}, v{t2}, v{EU[0]}")
        a(f"v_ldexp_f32 v{t3}, v{t3}, v{EU[1]}")
        a(f"v_cvt_pk_f16_f32 v{t2}, v{t2}, v{t3}")
        for phi in range(4):
            off = phi * (UCS - 2) + 512 * (7 - k)
            need_mask = (k == 7 and phi > 0)
            if need_mask:
                a(f"v_cmp_gt_u32 vcc, {256-phi}, v{TID}")
                a("s_and_saveexec_b64 s[68:69], vcc")
            a(f"ds_write_b16 v{UW}, v{t2} offset:{off}")
            a(f"ds_write_b16_d16_hi v{UW}, v{t2} offset:{off+17664}")
            if need_mask:
                a("s_mov_b64 exec, s[68:69]")
    keepNEU = UR
    a(f"v_mov_b32 v{keepNEU}, v{NEU}")
    NEU = keepNEU
    R.reset(mk)
    a("s_waitcnt lgkmcnt(0)")
    a("s_barrier")
    stamp(a)
    A31 = R(); H2 = R(); VB = R(); VA = R()
    a(f"v_and_b32 v{A31}, 31, v{LANE}")
    a(f"v_lshrrev_b32 v{H2}, 5, v{LANE}")
    a(f"v_mul_u32_u24 v{VB}, 80, v{A31}")
    a(f"v_lshl_add_u32 v{VB}, v{H2}, 4, v{VB}")
    a("s_mul_i32 s26, s23, 7680")
    a(f"s_add_u32 s26, s26, {KM + 31*80}")
    a(f"v_add_u32 v{VB}, s26, v{VB}")
    a(f"v_and_b32 v{t0}, 3, v{A31}")
    a(f"v_sub_u32 v{t0}, 3, v{t0}")
    a(f"v_mul_u32_u24 v{VA}, {UCS}, v{t0}")
    a(f"v_lshrrev_b32 v{t0}, 2, v{A31}")
    a(f"v_lshlrev_b32 v{t0}, 3, v{t0}")
    a(f"v_sub_u32 v{VA}, v{VA}, v{t0}")
    a(f"v_lshl_add_u32 v{VA}, v{H2}, 4, v{VA}")
    a("s_mul_i32 s26, s23, 17664")
    a(f"s_add_u32 s26, s26, {UC + 2*2044}")
    a(f"v_add_u32 v{VA}, s26, v{VA}")
    ACC0 = R(16, 4); ACC1 = R(16, 4)
    for r in range(16):
        a(f"v_mov_b32 v{ACC0+r}, 0")
        a(f"v_mov_b32 v{ACC1+r}, 0")
    BF = [R(8, 4), R(8, 4)]
    AF = [R(16, 4), R(16, 4)]
    VBc = R(); VAc = R()
    c1 = vr(ACC1, 16); c0 = vr(ACC0, 16)
    def conv_range(d_hi, d_lo, two):
        n = d_hi - d_lo + 1
        assert n % 2 == 0
        nl = 2 + (8 if two else 4)
        a(f"v_add_u32 v{VBc}, {((d_hi-1)*80) & 0xffffffff}, v{VB}")
        a(f"v_add_u32 v{VAc}, {(-64*(32-d_hi+1)) & 0xffffffff}, v{VA}")
        def rd(buf, first):
            bo = 80 if first else 0
            ao = 64 if first else 0
            a(f"ds_read_b128 {vr(BF[buf],4)}, v{VBc} offset:{bo}")
            a(f"ds_read_b128 {vr(BF[buf]+4,4)}, v{VBc} offset:{bo+32}")
            for h in range(2):
                a(f"ds_read_b64 {vr(AF[buf]+4*h,2)}, v{VAc} offset:{ao+32*h}")
                a(f"ds_read_b64 {vr(AF[buf]+4*h+2,2)}, v{VAc} offset:{ao+32*h+8}")
            if two:
                for h in range(2):
                    a(f"ds_read_b64 {vr(AF[buf]+8+4*h,2)}, v{VAc} offset:{2048+ao+32*h}")
                    a(f"ds_read_b64 {vr(AF[buf]+8+4*h+2,2)}, v{VAc} offset:{2048+ao+32*h+8}")
        def mm(buf):
            for h in range(2):
                a(f"v_mfma_f32_32x32x16_f16 {c1}, {vr(AF[buf]+4*h,4)}, {vr(BF[buf]+4*h,4)}, {c1}")
                if two:
                    a(f"v_mfma_f32_32x32x16_f16 {c0}, {vr(AF[buf]+8+4*h,4)}, {vr(BF[buf]+4*h,4)}, {c0}")
        rd(0, True)
        a(f"s_mov_b32 s67, {n//2}")
        lp = a.newlabel("s4_conv")
        a.label(lp)
        rd(1, False)
        a(f"v_subrev_u32 v{VBc}, 160, v{VBc}")
        a(f"v_subrev_u32 v{VAc}, 128, v{VAc}")
        a(f"s_waitcnt lgkmcnt({nl})")
        mm(0)
        rd(0, True)
        a(f"s_waitcnt lgkmcnt({nl})")
        mm(1)
        a("s_sub_u32 s67, s67, 1")
        a("s_cmp_lg_u32 s67, 0")
        a(f"s_cbranch_scc1 {lp}")
        a("s_waitcnt lgkmcnt(0)")
    lblB = a.newlabel("s4_partB"); lblJ = a.newlabel("s4_join")
    a("s_cmp_eq_u32 s24, 1")
    a(f"s_cbranch_scc1 {lblB}")
    conv_range(32, 1, False)
    conv_range(0, -7, True)
    a(f"s_branch {lblJ}")
    a.label(lblB)
    conv_range(-8, -31, True)
    a.label(lblJ)
    a.nop(16)
    stamp(a)
    RW = R()
    a(f"v_lshlrev_b32 v{RW}, 2, v{LANE}")
    a("s_lshl_b32 s26, s22, 12")
    a(f"s_add_u32 s26, s26, {RED}")
    a(f"v_add_u32 v{t2}, s26, v{RW}")
    a("s_xor_b32 s27, s22, 1")
    a("s_lshl_b32 s27, s27, 12")
    a(f"s_add_u32 s27, s27, {RED}")
    a(f"v_add_u32 v{t3}, s27, v{RW}")
    lblB2 = a.newlabel("s4_xB"); lblJ2 = a.newlabel("s4_xJ")
    a("s_cmp_eq_u32 s24, 1")
    a(f"s_cbranch_scc1 {lblB2}")
    for r in range(16):
        a(f"ds_write_b32 v{t2}, v{ACC0+r} offset:{r*256}")
    a(f"s_branch {lblJ2}")
    a.label(lblB2)
    for r in range(16):
        a(f"ds_write_b32 v{t2}, v{ACC1+r} offset:{r*256}")
    for r in range(16):
        a(f"v_mov_b32 v{ACC1+r}, v{ACC0+r}")
    a.label(lblJ2)
    a("s_waitcnt lgkmcnt(0)")
    a("s_barrier")
    for r in range(16):
        a(f"ds_read_b32 v{ACC0+r}, v{t3} offset:{r*256}")
    LB = R()
    a("s_xor_b32 s26, s24, 1")
    a("s_lshl_b32 s26, s26, 10")
    a(f"v_lshlrev_b32 v{LB}, 5, v{A31}")
    a(f"v_lshl_add_u32 v{LB}, v{H2}, 2, v{LB}")
    a(f"v_add_u32 v{LB}, s26, v{LB}")
    a("s_mul_i32 s26, s23, 17664")
    a(f"s_add_u32 s26, s26, {UC + 2*2044 - 48}")
    a(f"v_lshlrev_b32 v{t0}, 1, v{LB}")
    a(f"v_sub_u32 v{t0}, s26, v{t0}")
    UV = AF[0]
    for i in range(4):
        a(f"ds_read_b64 {vr(UV+2*i,2)}, v{t0} offset:{48-16*i}")
    a(f"v_lshlrev_b32 v{t2}, 1, v{LB}")
    a("s_lshl_b32 s26, s23, 12")
    a(f"s_add_u32 s26, s26, {OST}")
    a(f"v_add_u32 v{t2}, s26, v{t2}")
    a("s_waitcnt lgkmcnt(0)")
    UF = AF[1]; OP = BF[0]
    for i in range(4):
        a(f"v_cvt_f32_f16 v{UF+3}, v{UV+2*i}")
        a(f"v_lshrrev_b32 v{t0}, 16, v{UV+2*i}")
        a(f"v_cvt_f32_f16 v{UF+2}, v{t0}")
        a(f"v_cvt_f32_f16 v{UF+1}, v{UV+2*i+1}")
        a(f"v_lshrrev_b32 v{t0}, 16, v{UV+2*i+1}")
        a(f"v_cvt_f32_f16 v{UF+0}, v{t0}")
        for jj in range(4):
            r = 4 * i + jj
            a(f"v_add_f32 v{ACC1+r}, v{ACC1+r}, v{ACC0+r}")
            a(f"v_mul_f32 v{ACC1+r}, v{ACC1+r}, v{KSC}")
            a(f"v_ldexp_f32 v{UF+jj}, v{UF+jj}, v{NEU}")
            a(f"v_mul_f32 v{UF+jj}, v{UF+jj}, v{DSK}")
            a(f"v_cvt_pk_bf16_f32 v{t0}, v{ACC1+r}, v{UF+jj}")
            a(f"v_lshlrev_b32 v{t1}, 16, v{t0}")
            a(f"v_and_b32 v{t0}, s65, v{t0}")
            a(f"v_add_f32 v{UF+4+jj}, v{t0}, v{t1}")
        a(f"v_cvt_pk_bf16_f32 v{OP+2*i}, v{UF+4}, v{UF+5}")
        a(f"v_cvt_pk_bf16_f32 v{OP+2*i+1}, v{UF+6}, v{UF+7}")
        a(f"ds_write_b64 v{t2}, {vr(OP+2*i,2)} offset:{16*i}")
    a("s_waitcnt lgkmcnt(0)")
    a("s_barrier")
    a(f"v_lshlrev_b32 v{t0}, 1, v{TID}")
    a(f"v_add_u32 v{t0}, {OST}, v{t0}")
    O0 = ACC0; O1 = ACC0 + 8
    for k in range(8):
        a(f"ds_read_u16 v{O0+k}, v{t0} offset:{k*512}")
        a(f"ds_read_u16 v{O1+k}, v{t0} offset:{4096+k*512}")
    a(f"v_lshlrev_b32 v{t1}, 11, v{TID}")
    a("s_lshl_b32 s26, s20, 1")
    a("s_waitcnt lgkmcnt(0)")
    for k in range(8):
        a(f"v_lshl_or_b32 v{O0+k}, v{O1+k}, 16, v{O0+k}")
        a(f"buffer_store_dword v{O0+k}, v{t1}, s[56:59], s26 offen")
        if k < 7:
            a("s_add_u32 s26, s26, 524288")
    a("s_waitcnt vmcnt(0)") if STAMP["on"] else None
    stamp(a)
    a.label(end)
    assert R.hi <= S4D_VGPR, R.hi
```

```python
from asmlib import *
from k_gemm import WS_Q, WS_K, WS_V, WS_O, WS_KN, WS_TOTAL
from k_attn import wave_max

ATTN_VGPR = 128
ATTN_BLOCK = 512
BUFSZ = 32896
CB = 2 * BUFSZ + 1024
FLG = CB + 5120
ATTN_LDS = 73728

import os
PSTEP = int(os.environ.get('PSTEP', '1'))
def gen_attn(a, wg_base=0, U=8, force_slow=False):
    end = a.newlabel("at_end")
    if wg_base:
        a(f"s_sub_u32 s2, s2, {wg_base}")
    a("s_cmp_ge_u32 s2, 256")
    a(f"s_cbranch_scc1 {end}")
    stamp_init(a)
    a("s_load_dwordx2 s[8:9], s[0:1], 96")
    a("s_and_b32 s10, s2, 7")
    a("s_lshl_b32 s10, s10, 2")
    a("s_bfe_u32 s11, s2, 0x20003")
    a("s_add_u32 s10, s10, s11")
    a("s_lshr_b32 s11, s2, 5")
    SA = 0; SB = 16; NEGM = 32; OACC = 48
    QF = 64; KF = 68; VF = 76; P = 92
    T = 100
    a(f"v_mov_b32 v{T}, v0")
    a(f"v_and_b32 v{T+1}, 63, v{T}")
    a(f"v_lshrrev_b32 v{T+2}, 6, v{T}")
    a("s_nop 0")
    a(f"v_readfirstlane_b32 s12, v{T+2}")
    a("s_waitcnt lgkmcnt(0)")
    srd(a, 24, 8, WS_TOTAL)
    a("s_lshl_b32 s13, s10, 16")
    a(f"v_and_b32 v{T+5}, 31, v{T+1}")
    a(f"v_lshrrev_b32 v{T+6}, 5, v{T+1}")
    a("s_lshl_b32 s15, s11, 8")
    a("s_lshl_b32 s16, s12, 5")
    a("s_add_u32 s15, s15, s16")
    a(f"v_add_u32 v{T+7}, s15, v{T+5}")
    a(f"v_lshlrev_b32 v{T+8}, 15, v{T+6}")
    a(f"v_lshl_add_u32 v{T+8}, v{T+7}, 4, v{T+8}")
    a(f"s_add_u32 s14, s13, {WS_Q}")
    a(f"buffer_load_dwordx4 {vr(QF,4)}, v{T+8}, s[24:27], s14 offen")
    KN = T + 16
    a(f"v_lshlrev_b32 v{T+4}, 2, v{T+1}")
    a("s_lshl_b32 s14, s10, 8")
    a(f"s_add_u32 s14, s14, {WS_KN}")
    a(f"buffer_load_dword v{KN}, v{T+4}, s[24:27], s14 offen")
    a("s_and_b32 s28, s12, 1")
    a("s_bfe_u32 s29, s12, 0x10001")
    a("s_lshr_b32 s30, s12, 2")
    a("s_lshl_b32 s30, s30, 12")
    a("s_lshl_b32 s31, s28, 15")
    a(f"s_mul_i32 s33, s29, {WS_V - WS_K}")
    a("s_add_u32 s31, s31, s33")
    a("s_add_u32 s31, s31, s30")
    a("s_add_u32 s31, s31, s13")
    a(f"s_add_u32 s31, s31, {WS_K}")
    a("s_and_b32 s33, s12, 3")
    a("s_lshl_b32 s32, s33, 13")
    a("s_add_u32 s32, s32, s30")
    a("s_cmp_eq_u32 s33, 3")
    a("s_cselect_b32 s33, 64, 0")
    a("s_add_u32 s32, s32, s33")
    a(f"v_lshlrev_b32 v{T+3}, 4, v{T+1}")
    def dma(ph_sreg=None, ph=None):
        if ph is not None:
            a(f"s_add_u32 s34, s31, {ph*8192}")
            a(f"s_add_u32 s35, s32, {(ph&1)*BUFSZ}")
        else:
            a(f"s_lshl_b32 s34, {ph_sreg}, 13")
            a("s_add_u32 s34, s34, s31")
            a(f"s_and_b32 s35, {ph_sreg}, 1")
            a(f"s_mul_i32 s35, s35, {BUFSZ}")
            a("s_add_u32 s35, s35, s32")
        for i in range(4):
            a(f"s_add_u32 m0, s35, {1024*i}")
            a(f"s_add_u32 s36, s34, {1024*i}")
            a(f"buffer_load_dwordx4 v{T+3}, s[24:27], s36 offen lds")
    dma(ph=0); dma(ph=1)
    VK = T + 9; VV = T + 10
    a(f"v_lshlrev_b32 v{VK}, 13, v{T+6}")
    a(f"v_lshl_add_u32 v{VK}, v{T+5}, 4, v{VK}")
    a(f"v_and_b32 v{T+11}, 1, v{T+1}")
    a(f"v_mul_u32_u24 v{VV}, {8192+64}, v{T+11}")
    a(f"v_bfe_u32 v{T+11}, v{T+1}, 2, 2")
    a(f"v_lshl_add_u32 v{T+11}, v{T+6}, 2, v{T+11}")
    a(f"v_lshl_add_u32 v{VV}, v{T+11}, 4, v{VV}")
    a(f"v_bfe_u32 v{T+11}, v{T+1}, 1, 1")
    a(f"v_lshl_add_u32 v{VV}, v{T+11}, 3, v{VV}")
    a(f"v_add_u32 v{VV}, 16384, v{VV}")
    a(f"v_and_b32 v{T+11}, 3, v{T+1}")
    a(f"v_cmp_eq_u32 vcc, 0, v{T+11}")
    a(f"v_mov_b32 v{T+11}, {CB+8}")
    a(f"v_mov_b32 v{T+12}, {CB}")
    a("s_nop 0")
    a(f"v_cndmask_b32 v{T+11}, v{T+11}, v{T+12}, vcc")
    a(f"v_bfe_u32 v{T+12}, v{T+1}, 4, 1")
    a(f"v_cmp_eq_u32 vcc, 1, v{T+12}")
    a("s_nop 1")
    a(f"v_cndmask_b32 v{VV}, v{VV}, v{T+11}, vcc")
    VINC = T + 17; VBUF = T + 19
    a(f"v_mov_b32 v{VINC}, {U*512}")
    a(f"v_cndmask_b32 v{VINC}, v{VINC}, 0, vcc")
    a(f"v_mov_b32 v{VBUF}, {BUFSZ}")
    a(f"v_cndmask_b32 v{VBUF}, v{VBUF}, 0, vcc")
    a(f"v_mov_b32 v{VF}, 0x3f80")
    a(f"v_mov_b32 v{VF+1}, 0")
    a(f"v_mov_b32 v{VF+2}, 0")
    a(f"v_mov_b32 v{VF+3}, 0")
    a(f"v_lshlrev_b32 v{T+11}, 4, v{T}")
    a(f"v_add_u32 v{T+11}, {CB}, v{T+11}")
    a(f"v_cmp_gt_u32 vcc, 320, v{T}")
    a("s_and_saveexec_b64 s[20:21], vcc")
    a(f"ds_write_b128 v{T+11}, {vr(VF,4)}")
    a("s_mov_b64 exec, s[20:21]")
    FA = T + 18
    a(f"v_mov_b32 v{FA}, {FLG}")
    a(f"ds_write_b32 v{FA}, v{VF+1}")
    M0 = T + 12; M1 = T + 13
    VKc = T + 14; VVc = T + 15
    S = [SA, SB]
    a("s_waitcnt vmcnt(8)")
    wave_max(a, KN)
    a(f"v_readlane_b32 s22, v{KN}, 63")
    a(f"v_mov_b32 v{M0}, 0")
    a("s_mov_b32 s23, 0xffff0000")
    for i in range(4):
        a(f"v_lshlrev_b32 v{M1}, 16, v{QF+i}")
        a(f"v_fmac_f32 v{M0}, v{M1}, v{M1}")
        a(f"v_and_b32 v{M1}, s23, v{QF+i}")
        a(f"v_fmac_f32 v{M0}, v{M1}, v{M1}")
    a(f"v_mov_b32 v{M1}, v{M0}")
    a("s_nop 1")
    a(f"v_permlane32_swap_b32 v{M0}, v{M1}")
    a("s_nop 1")
    a(f"v_add_f32 v{M0}, v{M0}, v{M1}")
    a(f"v_mul_f32 v{M0}, s22, v{M0}")
    a(f"v_sqrt_f32 v{M0}, v{M0}")
    a("s_nop 0")
    a(f"v_mul_f32 v{M0}, {hexf(-1.02)}, v{M0}")
    for r in range(16):
        a(f"v_mov_b32 v{NEGM+r}, v{M0}")
        a(f"v_mov_b32 v{OACC+r}, 0")
    def vread(dst, tile_off):
        for t16 in range(2):
            for i in range(2):
                a(f"ds_read_b64_tr_b16 {vr(dst+4*t16+2*i,2)}, v{VVc} offset:{tile_off + (16*t16+8*i)*16}")
    def pro(kind):
        a(f"ds_read_b128 {vr(KF,4)}, v{VKc}")
        a(f"ds_read_b128 {vr(KF+4,4)}, v{VKc} offset:512")
        if kind == 2:
            vread(VF, 0)
            a("s_waitcnt lgkmcnt(5)")
            a(f"v_mfma_f32_32x32x16_bf16 {vr(SA,16)}, {vr(KF,4)}, {vr(QF,4)}, {vr(NEGM,16)}")
        else:
            a("s_waitcnt lgkmcnt(1)")
            a(f"v_mfma_f32_32x32x16_bf16 {vr(SA,16)}, {vr(KF,4)}, {vr(QF,4)}, 0")
        a.nop(8)
    def group(kind, pp=None):
        for u in range(U):
            b = u & 1
            if pp is not None and u % PSTEP == 0:
                a(f"s_setprio {((u // PSTEP) + pp) & 1}")
            a(f"ds_read_b128 {vr(KF+4*b,4)}, v{VKc} offset:{(u+2)*512}")
            if kind == 2:
                vread(VF + 8 * (1 - b), (u + 1) * 512)
                a("s_waitcnt lgkmcnt(9)")
                a(f"v_mfma_f32_32x32x16_bf16 {vr(S[1-b],16)}, {vr(KF+4*(1-b),4)}, {vr(QF,4)}, {vr(NEGM,16)}")
                s = S[b]
                if os.environ.get("ASCHED", "0") == "1":
                    for i in range(0, 8):
                        a(f"v_exp_f32 v{s+i}, v{s+i}")
                    for i in range(0, 4):
                        a(f"v_cvt_pk_bf16_f32 v{P+i}, v{s+2*i}, v{s+2*i+1}")
                    a(f"v_exp_f32 v{s+8}, v{s+8}")
                    a(f"v_exp_f32 v{s+9}, v{s+9}")
                    a("s_waitcnt lgkmcnt(5)")
                    a(f"v_mfma_f32_32x32x16_bf16 {vr(OACC,16)}, {vr(VF+8*b,4)}, {vr(P,4)}, {vr(OACC,16)}")
                    for i in range(10, 16):
                        a(f"v_exp_f32 v{s+i}, v{s+i}")
                    for i in range(4, 8):
                        a(f"v_cvt_pk_bf16_f32 v{P+i}, v{s+2*i}, v{s+2*i+1}")
                    a("s_nop 1")
                    a(f"v_mfma_f32_32x32x16_bf16 {vr(OACC,16)}, {vr(VF+8*b+4,4)}, {vr(P+4,4)}, {vr(OACC,16)}")
                else:
                  for hh in range(2):
                    for i in range(8 * hh, 8 * hh + 8):
                        a(f"v_exp_f32 v{s+i}, v{s+i}")
                    for i in range(4 * hh, 4 * hh + 4):
                        a(f"v_cvt_pk_bf16_f32 v{P+i}, v{s+2*i}, v{s+2*i+1}")
                    if hh == 0:
                        a("s_waitcnt lgkmcnt(5)")
                        a("s_nop 0")
                    else:
                        a("s_nop 1")
                    a(f"v_mfma_f32_32x32x16_bf16 {vr(OACC,16)}, {vr(VF+8*b+4*hh,4)}, {vr(P+4*hh,4)}, {vr(OACC,16)}")
            else:
                a("s_waitcnt lgkmcnt(1)")
                a(f"v_mfma_f32_32x32x16_bf16 {vr(S[1-b],16)}, {vr(KF+4*(1-b),4)}, {vr(QF,4)}, 0")
                a("s_nop 1")
                s = S[b]
                for i in range(4):
                    a(f"v_max3_f32 v{M0}, v{s+4*i}, v{s+4*i+1}, v{M0}")
                    a(f"v_max3_f32 v{M1}, v{s+4*i+2}, v{s+4*i+3}, v{M1}")
        a(f"v_add_u32 v{VKc}, {U*512}, v{VKc}")
        a(f"v_add_u32 v{VVc}, v{VINC}, v{VVc}")
    def stream(kind, first, pp=None):
        a("s_waitcnt vmcnt(4)")
        a("s_mov_b32 s17, 0")
        lp = a.newlabel("at_lp"); lg = a.newlabel("at_g"); lw = a.newlabel("at_w"); ld = a.newlabel("at_d")
        a.label(lp)
        a("s_bitcmp1_b32 s17, 0")
        a(f"s_cbranch_scc1 {lg}")
        a("s_cmp_eq_u32 s17, 0")
        a(f"s_cbranch_scc1 {lw}")
        a("s_waitcnt vmcnt(0)")
        a.label(lw)
        a("s_waitcnt lgkmcnt(0)")
        if first: stamp(a)
        a("s_barrier")
        a("s_lshr_b32 s37, s17, 1")
        a("s_cmp_eq_u32 s37, 0")
        a(f"s_cbranch_scc1 {ld}")
        a("s_cmp_eq_u32 s37, 3")
        a(f"s_cbranch_scc1 {ld}")
        a("s_add_u32 s38, s37, 1")
        dma(ph_sreg="s38")
        a.label(ld)
        a("s_and_b32 s37, s37, 1")
        a(f"s_mul_i32 s38, s37, {BUFSZ}")
        a(f"v_add_u32 v{VKc}, s38, v{VK}")
        a(f"v_mul_lo_u32 v{VVc}, s37, v{VBUF}")
        a(f"v_add_u32 v{VVc}, v{VVc}, v{VV}")
        pro(kind)
        a.label(lg)
        import os
        PR = os.environ.get("APRIO", "alt")
        if PR == "alt":
            lq = a.newlabel("at_pr"); lq2 = a.newlabel("at_pr2")
            a("s_lshr_b32 s39, s12, 2")
            a("s_xor_b32 s39, s39, s17")
            a("s_bitcmp1_b32 s39, 0")
            a(f"s_cbranch_scc1 {lq}")
            a("s_setprio 0")
            a(f"s_branch {lq2}")
            a.label(lq)
            a("s_setprio 1")
            a.label(lq2)
        group(kind, pp)
        a("s_add_u32 s17, s17, 1")
        a("s_cmp_lt_u32 s17, 8")
        a(f"s_cbranch_scc1 {lp}")
        a("s_waitcnt lgkmcnt(0)")
        a.nop(16)
    import os
    if os.environ.get("APRIO", "") == "young":
        lq = a.newlabel("at_pry")
        a("s_cmp_lt_u32 s12, 4")
        a(f"s_cbranch_scc1 {lq}")
        a("s_setprio 1")
        a.label(lq)
    if os.environ.get("APRIO", "").startswith("st"):
        lq = a.newlabel("at_hi"); lq2 = a.newlabel("at_hj")
        a("s_cmp_ge_u32 s12, 4")
        a(f"s_cbranch_scc1 {lq}")
        stream(2, True, 0)
        a(f"s_branch {lq2}")
        a.label(lq)
        stream(2, True, 1)
        a.label(lq2)
        a("s_setprio 0")
    else:
        stream(2, True)
    stamp(a)
    a(f"v_mov_b32 v{M0}, v{OACC+8}")
    a(f"v_mov_b32 v{M1}, v{OACC+8}")
    a("s_nop 1")
    a(f"v_permlane32_swap_b32 v{M0}, v{M1}")
    a("s_nop 1")
    lchk = a.newlabel("at_chk")
    a(f"v_cmp_nle_f32 vcc, {hexf(2.0**-64)}, v{M0}")
    if force_slow:
        a("s_mov_b64 vcc, -1")
    a("s_nop 1")
    a(f"s_cbranch_vccz {lchk}")
    a(f"v_mov_b32 v{M1}, 1")
    a(f"ds_write_b32 v{FA}, v{M1}")
    a("s_waitcnt lgkmcnt(0)")
    a.label(lchk)
    a("s_barrier")
    a(f"ds_read_b32 v{M1}, v{FA}")
    a("s_waitcnt lgkmcnt(0)")
    a(f"v_readfirstlane_b32 s33, v{M1}")
    lfin = a.newlabel("at_fin")
    a("s_nop 3")
    a("s_cmp_eq_u32 s33, 0")
    a(f"s_cbranch_scc1 {lfin}")
    a(f"v_mov_b32 v{M0}, 0xff800000")
    a(f"v_mov_b32 v{M1}, 0xff800000")
    dma(ph=0); dma(ph=1)
    stream(1, False)
    a(f"v_max_f32 v{M0}, v{M0}, v{M1}")
    a(f"v_mov_b32 v{M1}, v{M0}")
    a("s_nop 1")
    a(f"v_permlane32_swap_b32 v{M0}, v{M1}")
    a("s_nop 1")
    a(f"v_max_f32 v{M0}, v{M0}, v{M1}")
    a.nop(4)
    for r in range(16):
        a(f"v_sub_f32 v{NEGM+r}, 0, v{M0}")
        a(f"v_mov_b32 v{OACC+r}, 0")
    a("s_barrier")
    dma(ph=0); dma(ph=1)
    stream(2, False)
    a(f"v_mov_b32 v{M0}, v{OACC+8}")
    a(f"v_mov_b32 v{M1}, v{OACC+8}")
    a("s_nop 1")
    a(f"v_permlane32_swap_b32 v{M0}, v{M1}")
    a("s_nop 1")
    a.label(lfin)
    a(f"v_rcp_f32 v{M0}, v{M0}")
    a("s_nop 1")
    for r in range(8):
        a(f"v_mul_f32 v{OACC+r}, v{OACC+r}, v{M0}")
    for i in range(4):
        a(f"v_cvt_pk_bf16_f32 v{P+i}, v{OACC+2*i}, v{OACC+2*i+1}")
    a(f"s_add_u32 s14, s13, {WS_O}")
    a(f"buffer_store_dwordx4 {vr(P,4)}, v{T+8}, s[24:27], s14 offen nt")
    a("s_waitcnt vmcnt(0)") if STAMP["on"] else None
    stamp(a)
    a.label(end)
```

```python
from asmlib import *
import os
from k_gemm import WS_Q, WS_K, WS_V, WS_O, WS_KN, WS_TOTAL, QSCALE, MB
from k_attn import wave_max

def gen_qkv6(a, wg_base=0):
    end = a.newlabel("qkv_end")
    a(f"s_cmp_ge_u32 s2, {256+wg_base}")
    a(f"s_cbranch_scc1 {end}")
    stamp_init(a)
    if wg_base:
        a(f"s_sub_u32 s2, s2, {wg_base}")
    a("s_load_dwordx2 s[4:5], s[0:1], 56")
    a("s_load_dwordx2 s[6:7], s[0:1], 64")
    a("s_load_dwordx2 s[8:9], s[0:1], 96")
    a("s_and_b32 s13, s2, 7")
    a("s_lshl_b32 s13, s13, 1")
    a("s_bfe_u32 s10, s2, 0x10003")
    a("s_add_u32 s10, s10, s13")
    a("s_lshr_b32 s11, s2, 4")
    XA = 0; ACC = 128; WF = 176
    EP = 212
    TID, LANE, H2, TOK, VW, XO, t0, t1, t2 = range(240, 249)
    a(f"v_mov_b32 v{TID}, v0")
    a(f"v_and_b32 v{LANE}, 63, v{TID}")
    a(f"v_lshrrev_b32 v{t0}, 6, v{TID}")
    a("s_nop 0")
    a(f"v_readfirstlane_b32 s12, v{t0}")
    a("s_waitcnt lgkmcnt(0)")
    srd(a, 16, 4, 2 * MB)
    srd(a, 20, 6, 512 * 1536 * 2)
    srd(a, 24, 8, WS_TOTAL)
    a("s_mul_i32 s14, s11, 192")
    a(f"v_and_b32 v{t0}, 31, v{LANE}")
    a(f"v_lshrrev_b32 v{H2}, 5, v{LANE}")
    a("s_lshl_b32 s13, s10, 7")
    a("s_lshl_b32 s15, s12, 5")
    a("s_add_u32 s13, s13, s15")
    a(f"v_add_u32 v{TOK}, s13, v{t0}")
    a(f"v_lshlrev_b32 v{XO}, 10, v{TOK}")
    a(f"v_lshl_add_u32 v{XO}, v{H2}, 5, v{XO}")
    a("s_lshl_b32 s15, s12, 10")
    def wchunk(c):
        for i in range(6 * c, 6 * c + 6):
            a(f"v_add_u32 v{t0}, {256*i}, v{TID}")
            a(f"v_mul_u32_u24 v{t1}, 43691, v{t0}")
            a(f"v_lshrrev_b32 v{t1}, 19, v{t1}")
            a(f"v_mul_u32_u24 v{t1}, 2880, v{t1}")
            a(f"s_add_u32 m0, s15, {(c%3)*24576 + 4096*(i-6*c)}")
            a(f"v_lshl_add_u32 v{t1}, v{t0}, 4, v{t1}")
            a(f"buffer_load_dwordx4 v{t1}, s[20:23], s14 offen lds")
    def xchunk(c):
        for kc in range(4 * c, 4 * c + 4):
            a(f"buffer_load_dwordx4 {vr(XA+8*kc,4)}, v{XO}, s[16:19], 0 offen offset:{kc*64}")
            a(f"buffer_load_dwordx4 {vr(XA+8*kc+4,4)}, v{XO}, s[16:19], 0 offen offset:{kc*64+16}")
    wchunk(0); xchunk(0); wchunk(1); xchunk(1)
    a(f"v_bfe_u32 v{t0}, v{LANE}, 2, 2")
    a(f"v_lshl_add_u32 v{VW}, v{H2}, 4, v{t0}")
    a(f"v_mul_u32_u24 v{VW}, 192, v{VW}")
    a(f"v_bfe_u32 v{t0}, v{LANE}, 4, 1")
    a(f"v_lshl_add_u32 v{VW}, v{t0}, 5, v{VW}")
    a(f"v_and_b32 v{t0}, 3, v{LANE}")
    a(f"v_lshl_add_u32 v{VW}, v{t0}, 3, v{VW}")
    a(f"v_add_u32 v{t2}, 49152, v{VW}")
    for r in range(48):
        a(f"v_mov_b32 v{ACC+r}, 0")
    steps = [(kc, st) for kc in range(16) for st in range(2)]
    def rd(idx):
        kc, st = steps[idx]
        c = kc >> 2
        buf = idx % 3
        off = (32 * (kc & 3) + 8 * st) * 192
        reg = VW
        if c % 3 == 1: off += 24576
        if c % 3 == 2: reg = t2
        for ct in range(3):
            base = WF + buf * 12 + ct * 4
            a(f"ds_read_b64_tr_b16 {vr(base,2)}, v{reg} offset:{off+ct*64}")
            a(f"ds_read_b64_tr_b16 {vr(base+2,2)}, v{reg} offset:{off+ct*64+768}")
    for c in range(4):
        if c == 0:
            wchunk(2); xchunk(2)
            a("s_waitcnt vmcnt(28)")
        elif c == 1:
            a("s_waitcnt vmcnt(14)")
        elif c == 2:
            a("s_waitcnt vmcnt(14)")
        else:
            a("s_waitcnt vmcnt(0)")
        if c == 0: stamp(a)
        a("s_barrier")
        if c == 1:
            wchunk(3); xchunk(3)
        rd(8 * c); rd(8 * c + 1)
        for idx in range(8 * c, 8 * c + 8):
            last = 8 * c + 7
            kc, st = steps[idx]
            a("s_waitcnt lgkmcnt(6)" if idx < last else "s_waitcnt lgkmcnt(0)")
            if idx + 2 <= last:
                rd(idx + 2)
            buf = idx % 3
            xa = XA + 8 * kc + 4 * st
            for ct in range(3):
                wf = WF + buf * 12 + ct * 4
                acc = vr(ACC + 16 * ct, 16)
                a(f"v_mfma_f32_32x32x16_bf16 {acc}, {vr(wf,4)}, {vr(xa,4)}, {acc}")
    a.nop(16)
    stamp(a)
    a(f"v_lshlrev_b32 v{t0}, 15, v{H2}")
    a(f"v_lshl_add_u32 v{t0}, v{TOK}, 4, v{t0}")
    a(f"v_mov_b32 v{t1}, 0")
    a("s_mul_i32 s28, s11, 3")
    a("s_lshr_b32 s35, s13, 3")
    for ct in range(3):
        src0 = ACC + 16 * ct
        a(f"s_add_u32 s29, s28, {ct}")
        a("s_lshr_b32 s30, s29, 4")
        a("s_and_b32 s31, s29, 15")
        a(f"s_mov_b32 s32, {hexf(QSCALE)}")
        a("s_cmp_eq_u32 s30, 0")
        a("s_cselect_b32 s32, s32, 1.0")
        for r in range(16):
            a(f"v_mul_f32 v{src0+r}, s32, v{src0+r}")
        lblNK = a.newlabel("qkv_nok")
        a("s_cmp_lg_u32 s30, 1")
        a(f"s_cbranch_scc1 {lblNK}")
        a("s_lshl_b32 s33, s31, 9")
        a("s_add_u32 s33, s33, s35")
        a(f"s_add_u32 s33, s33, {WS_KN}")
        for hl in range(2):
            src = src0 + 8 * hl
            q = WF + 2 * hl
            a(f"v_mul_f32 v{q}, v{src}, v{src}")
            for i in range(1, 8):
                a(f"v_fmac_f32 v{q}, v{src+i}, v{src+i}")
            a(f"v_mov_b32 v{q+1}, v{q}")
            a("s_nop 1")
            a(f"v_permlane32_swap_b32 v{q}, v{q+1}")
            a("s_nop 1")
            a(f"v_add_f32 v{q}, v{q}, v{q+1}")
            wave_max(a, q)
        a("s_mov_b32 s36, 0")
        a("s_mov_b32 s37, 0x80000000")
        a("s_mov_b64 exec, s[36:37]")
        for hl in range(2):
            a(f"buffer_store_dword v{WF+2*hl}, v{t1}, s[24:27], s33 offen offset:{hl*256}")
        a("s_mov_b64 exec, -1")
        a.label(lblNK)
        a("s_lshl_b32 s33, s30, 21")
        a("s_lshl_b32 s34, s31, 17")
        a("s_add_u32 s33, s33, s34")
        for hl in range(2):
            src = src0 + 8 * hl
            dst = EP + (ct * 2 + hl) * 4
            for i in range(4):
                a(f"v_cvt_pk_bf16_f32 v{dst+i}, v{src+2*i}, v{src+2*i+1}")
            a(f"buffer_store_dwordx4 {vr(dst,4)}, v{t0}, s[24:27], s33 offen nt")
            a("s_add_u32 s33, s33, 65536")
    a("s_waitcnt vmcnt(0)") if STAMP["on"] else None
    stamp(a)
    a.label(end)
```

```python
import sys
from asmlib import *
from k_gemm import *
from k_attn import wave_max
from k_attn5 import *
from k_qkv5 import *
from k_qkv6 import gen_qkv6
try:
    from k_s4d import *
    HAVE_S4D = True
except ImportError:
    HAVE_S4D = False

import os
FORCE_SLOW = bool(os.environ.get("FORCE_SLOW"))
NAME = "concat_heads__ssm_conv_s4d__softmax_full_mha__prompt"
hdr = open(f"cdna_kernels/{NAME}.s.ref").read().split("; Override launch geometry")[0]

def build(diag=False):
    STAMP["on"] = diag
    ARR = os.environ.get("ARR", "C")
    V = (lambda n: 256 if n > 128 else 128) if diag else (lambda n: n)
    a = Asm()
    launches = []
    descs = []
    a.raw('.amdgcn_target "amdgcn-amd-amdhsa--gfx950"')
    if ARR == "E":
        kernel_header(a, "qkv_kernel")
        lbl = a.newlabel("pre_q")
        first_s4d = os.environ.get("EORD", "q") == "s"
        a("s_cmp_ge_u32 s2, 256")
        a(f"s_cbranch_scc1 {lbl}")
        (gen_s4d if first_s4d else gen_qkv6)(a); a("s_endpgm")
        a.label(lbl)
        (gen_qkv6 if first_s4d else gen_s4d)(a, wg_base=256); a("s_endpgm")
        launches.append(f"; @launch kernel=qkv_kernel grid=(512,1,1) block=(256,1,1) lds={S4D_LDS}")
        descs.append(kernel_desc("qkv_kernel", 256))
    else:
        kernel_header(a, "qkv_kernel"); gen_qkv5(a, kgen=(ARR in "AB")); a("s_endpgm")
        launches.append(f"; @launch kernel=qkv_kernel grid=(256,1,1) block=(256,1,1) lds={QKV_LDS}")
        descs.append(kernel_desc("qkv_kernel", V(QKV_VGPR)))
    kernel_header(a, "mid_kernel")
    if ARR in "BC":
        lbl = a.newlabel("mid_s4d")
        a("s_cmp_ge_u32 s2, 256")
        a(f"s_cbranch_scc1 {lbl}")
        gen_attn(a, force_slow=FORCE_SLOW); a("s_endpgm")
        a.label(lbl)
        lbl2 = a.newlabel("mid_exit")
        a("v_cmp_gt_u32 vcc, 256, v0")
        a("s_nop 1")
        a(f"s_cbranch_vccz {lbl2}")
        a(f"s_setprio {os.environ.get('S4PRIO', '1')}")
        (gen_conv if ARR == "B" else gen_s4d)(a, wg_base=256)
        a.label(lbl2)
        a("s_endpgm")
        launches.append(f"; @launch kernel=mid_kernel grid=(512,1,1) block=(512,1,1) lds={ATTN_LDS}")
    else:
        gen_attn(a, force_slow=FORCE_SLOW); a("s_endpgm")
        launches.append(f"; @launch kernel=mid_kernel grid=(256,1,1) block=(512,1,1) lds={ATTN_LDS}")
    descs.append(kernel_desc("mid_kernel", 128))
    kernel_header(a, "fin_kernel")
    if ARR in "AD":
        lbl = a.newlabel("fin_op")
        a("s_cmp_ge_u32 s2, 256")
        a(f"s_cbranch_scc1 {lbl}")
        (gen_conv if ARR == "A" else gen_s4d)(a); a("s_endpgm")
        a.label(lbl)
        gen_oproj(a, wg_base=256); a("s_endpgm")
        launches.append(f"; @launch kernel=fin_kernel grid=(512,1,1) block=(256,1,1) lds={S4D_LDS}")
    else:
        gen_oproj(a); a("s_endpgm")
        launches.append(f"; @launch kernel=fin_kernel grid=(256,1,1) block=(256,1,1) lds=65536")
    descs.append(kernel_desc("fin_kernel", 256))
    return hdr + "\n".join(launches) + "\n" + a.text() + "".join(descs)

def build_sep(diag=False):
    STAMP["on"] = diag
    V = (lambda n: 256 if n > 128 else 128) if diag else (lambda n: n)
    a = Asm()
    launches = []
    descs = []
    a.raw('.amdgcn_target "amdgcn-amd-amdhsa--gfx950"')
    kernel_header(a, "qkv_kernel"); gen_qkv5(a); a("s_endpgm")
    launches.append(f"; @launch kernel=qkv_kernel grid=(256,1,1) block=(256,1,1) lds={QKV_LDS}")
    descs.append(kernel_desc("qkv_kernel", V(QKV_VGPR)))
    kernel_header(a, "s4d_kernel"); gen_s4d(a); a("s_endpgm")
    launches.append(f"; @launch kernel=s4d_kernel grid=(256,1,1) block=(256,1,1) lds={S4D_LDS}")
    descs.append(kernel_desc("s4d_kernel", V(S4D_VGPR)))
    kernel_header(a, "attn_kernel"); gen_attn(a, force_slow=FORCE_SLOW); a("s_endpgm")
    launches.append(f"; @launch kernel=attn_kernel grid=(256,1,1) block=({ATTN_BLOCK},1,1) lds={ATTN_LDS}")
    descs.append(kernel_desc("attn_kernel", V(ATTN_VGPR)))
    kernel_header(a, "fin_kernel")
    gen_oproj(a); a("s_endpgm")
    launches.append(f"; @launch kernel=fin_kernel grid=(256,1,1) block=(256,1,1) lds=65536")
    descs.append(kernel_desc("fin_kernel", 256))
    return hdr + "\n".join(launches) + "\n" + a.text() + "".join(descs)

if __name__ == "__main__":
    out = sys.argv[1] if len(sys.argv) > 1 else f"cdna_kernels/{NAME}.s"
    b = build_sep if os.environ.get("SEP") else build
    open(out, "w").write(b(diag=(len(sys.argv) > 2)))
    print("wrote", out)
```

```python
import sys
from asmlib import *
from k_gemm import *
from k_attn import wave_max
from k_attn5 import *
from k_qkv5 import *
from k_qkv6 import gen_qkv6
try:
    from k_s4d import *
    HAVE_S4D = True
except ImportError:
    HAVE_S4D = False

import os
FORCE_SLOW = bool(os.environ.get("FORCE_SLOW"))
NAME = "concat_heads__ssm_conv_s4d__softmax_full_mha__prompt"
hdr = open(f"cdna_kernels/{NAME}.s.ref").read().split("; Override launch geometry")[0]

def build(diag=False):
    STAMP["on"] = diag
    ARR = os.environ.get("ARR", "C")
    V = (lambda n: 256 if n > 128 else 128) if diag else (lambda n: n)
    a = Asm()
    launches = []
    descs = []
    a.raw('.amdgcn_target "amdgcn-amd-amdhsa--gfx950"')
    if ARR == "E":
        kernel_header(a, "qkv_kernel")
        lbl = a.newlabel("pre_q")
        first_s4d = os.environ.get("EORD", "q") == "s"
        a("s_cmp_ge_u32 s2, 256")
        a(f"s_cbranch_scc1 {lbl}")
        (gen_s4d if first_s4d else gen_qkv6)(a); a("s_endpgm")
        a.label(lbl)
        (gen_qkv6 if first_s4d else gen_s4d)(a, wg_base=256); a("s_endpgm")
        launches.append(f"; @launch kernel=qkv_kernel grid=(512,1,1) block=(256,1,1) lds={S4D_LDS}")
        descs.append(kernel_desc("qkv_kernel", 256))
    else:
        kernel_header(a, "qkv_kernel"); gen_qkv5(a, kgen=(ARR in "AB")); a("s_endpgm")
        launches.append(f"; @launch kernel=qkv_kernel grid=(256,1,1) block=(256,1,1) lds={QKV_LDS}")
        descs.append(kernel_desc("qkv_kernel", V(QKV_VGPR)))
    kernel_header(a, "mid_kernel")
    if ARR in "BC":
        lbl = a.newlabel("mid_s4d")
        sfirst = os.environ.get("MORD", "a") == "s"
        a("s_cmp_ge_u32 s2, 256")
        a(f"s_cbranch_scc{'0' if sfirst else '1'} {lbl}")
        gen_attn(a, wg_base=(256 if sfirst else 0), force_slow=FORCE_SLOW); a("s_endpgm")
        a.label(lbl)
        lbl2 = a.newlabel("mid_exit")
        a("v_cmp_gt_u32 vcc, 256, v0")
        a("s_nop 1")
        a(f"s_cbranch_vccz {lbl2}")
        a(f"s_setprio {os.environ.get('S4PRIO', '1')}")
        (gen_conv if ARR == "B" else gen_s4d)(a, wg_base=(0 if sfirst else 256))
        a.label(lbl2)
        a("s_endpgm")
        launches.append(f"; @launch kernel=mid_kernel grid=(512,1,1) block=(512,1,1) lds={ATTN_LDS}")
    else:
        gen_attn(a, force_slow=FORCE_SLOW); a("s_endpgm")
        launches.append(f"; @launch kernel=mid_kernel grid=(256,1,1) block=(512,1,1) lds={ATTN_LDS}")
    descs.append(kernel_desc("mid_kernel", 128))
    kernel_header(a, "fin_kernel")
    if ARR in "AD":
        lbl = a.newlabel("fin_op")
        a("s_cmp_ge_u32 s2, 256")
        a(f"s_cbranch_scc1 {lbl}")
        (gen_conv if ARR == "A" else gen_s4d)(a); a("s_endpgm")
        a.label(lbl)
        gen_oproj(a, wg_base=256); a("s_endpgm")
        launches.append(f"; @launch kernel=fin_kernel grid=(512,1,1) block=(256,1,1) lds={S4D_LDS}")
    else:
        gen_oproj(a); a("s_endpgm")
        launches.append(f"; @launch kernel=fin_kernel grid=(256,1,1) block=(256,1,1) lds=65536")
    descs.append(kernel_desc("fin_kernel", 256))
    return hdr + "\n".join(launches) + "\n" + a.text() + "".join(descs)

def build_sep(diag=False):
    STAMP["on"] = diag
    V = (lambda n: 256 if n > 128 else 128) if diag else (lambda n: n)
    a = Asm()
    launches = []
    descs = []
    a.raw('.amdgcn_target "amdgcn-amd-amdhsa--gfx950"')
    kernel_header(a, "qkv_kernel"); gen_qkv5(a); a("s_endpgm")
    launches.append(f"; @launch kernel=qkv_kernel grid=(256,1,1) block=(256,1,1) lds={QKV_LDS}")
    descs.append(kernel_desc("qkv_kernel", V(QKV_VGPR)))
    kernel_header(a, "s4d_kernel"); gen_s4d(a); a("s_endpgm")
    launches.append(f"; @launch kernel=s4d_kernel grid=(256,1,1) block=(256,1,1) lds={S4D_LDS}")
    descs.append(kernel_desc("s4d_kernel", V(S4D_VGPR)))
    kernel_header(a, "attn_kernel"); gen_attn(a, force_slow=FORCE_SLOW); a("s_endpgm")
    launches.append(f"; @launch kernel=attn_kernel grid=(256,1,1) block=({ATTN_BLOCK},1,1) lds={ATTN_LDS}")
    descs.append(kernel_desc("attn_kernel", V(ATTN_VGPR)))
    kernel_header(a, "fin_kernel")
    gen_oproj(a); a("s_endpgm")
    launches.append(f"; @launch kernel=fin_kernel grid=(256,1,1) block=(256,1,1) lds=65536")
    descs.append(kernel_desc("fin_kernel", 256))
    return hdr + "\n".join(launches) + "\n" + a.text() + "".join(descs)

if __name__ == "__main__":
    out = sys.argv[1] if len(sys.argv) > 1 else f"cdna_kernels/{NAME}.s"
    b = build_sep if os.environ.get("SEP") else build
    open(out, "w").write(b(diag=(len(sys.argv) > 2)))
    print("wrote", out)
```
